```python
import torch

def _softmax(x, axis=-1):
    return torch.softmax(x, dim=axis)

def _gelu(x):
    return torch.nn.functional.gelu(x, approximate='tanh')

def _silu(x):
    return torch.nn.functional.silu(x)

def _sigmoid(x):
    return torch.sigmoid(x)

def _layernorm(x, axis=-1, eps=1e-05):
    m = x.mean(dim=axis, keepdim=True)
    v = x.var(dim=axis, keepdim=True, unbiased=False)
    return (x - m) / torch.sqrt(v + eps)

def _scatter_add(tgt, idx, src, axis=0):
    return tgt.clone().index_add_(axis, idx, src)

def _segment_sum(src, seg, n):
    out = torch.zeros((n,) + src.shape[1:], dtype=src.dtype)
    return out.index_add_(0, seg, src)

def _pad(x, pw):
    flat = tuple((v for pair in reversed(pw) for v in pair))
    return torch.nn.functional.pad(x, flat)
kernel_name = 'recurrent_scan__memory_aug_recurrent_mem_tr__geglu_ffn__prompt'

def setup_inputs():

    _w = lambda a: (lambda t: t.to(torch.bfloat16) if t.is_floating_point() else t)(torch.as_tensor(a))

    def _A_setup():
        B, S, Dm = (1, 2048, 576)
        H, Dh = (32, 128)
        M, seg = (8, 32)
        seg = min(seg, S)
        S = S // seg * seg
        return {'x': _w((lambda *s: torch.randn(*s, dtype=torch.bfloat16) * 0.05)(B, S, Dm)), 'mem0': _w((lambda *s: torch.randn(*s, dtype=torch.bfloat16) * 0.2)(B, M, Dm)), 'Wq': _w((lambda *s: torch.randn(*s, dtype=torch.bfloat16) * 0.8)(Dm, H, Dh) * Dm ** (-0.5)), 'Wk': _w((lambda *s: torch.randn(*s, dtype=torch.bfloat16) * 0.8)(Dm, H, Dh) * Dm ** (-0.5)), 'Wv': _w((lambda *s: torch.randn(*s, dtype=torch.bfloat16) * 0.2)(Dm, H, Dh) * Dm ** (-0.5)), 'Wo': _w((lambda *s: torch.randn(*s, dtype=torch.bfloat16) * 0.2)(H, Dh, Dm) * (H * Dh) ** (-0.5)), 'seg_len': seg}
    _A_in = _A_setup()

    def _B_setup():
        B, S, D, F = (1, 2048, 576, 4608)
        return {'x': _w((lambda *s: torch.randn(*s, dtype=torch.bfloat16) * 0.05)(B, S, D)), 'w_gate': _w((lambda *s: torch.randn(*s, dtype=torch.bfloat16) * 0.1)(D, F)), 'w_up': _w((lambda *s: torch.randn(*s, dtype=torch.bfloat16) * 0.1)(D, F)), 'w_down': _w((lambda *s: torch.randn(*s, dtype=torch.bfloat16) * 0.1)(F, D))}
    _B_in = _B_setup()
    return {'A_x': _A_in['x'], 'A_mem0': _A_in['mem0'], 'A_Wq': _A_in['Wq'], 'A_Wk': _A_in['Wk'], 'A_Wv': _A_in['Wv'], 'A_Wo': _A_in['Wo'], 'A_seg_len': _A_in['seg_len'], 'B_x': _B_in['x'], 'B_w_gate': _B_in['w_gate'], 'B_w_up': _B_in['w_up'], 'B_w_down': _B_in['w_down']}

def reference(A_x, A_mem0, A_Wq, A_Wk, A_Wv, A_Wo, A_seg_len, B_x, B_w_gate, B_w_up, B_w_down):

    def _A_ref(x, mem0, Wq, Wk, Wv, Wo, seg_len):
        B, S, Dm = x.shape
        H, Dh = (Wq.shape[1], Wq.shape[2])
        M = mem0.shape[1]
        scale = Dh ** (-0.5)
        n_seg = S // seg_len
        L = M + seg_len
        idx = torch.arange(L)
        mask = (idx[:, None] < M) | (idx[:, None] >= idx[None, :])
        mem = mem0
        outs = []
        for s in range(n_seg):
            xs = x[:, s * seg_len:(s + 1) * seg_len, :].clone()
            h = torch.concatenate([mem, xs], axis=1)
            q = torch.einsum('btd,dhe->bhte', h, Wq)
            k = torch.einsum('btd,dhe->bhte', h, Wk)
            v = torch.einsum('btd,dhe->bhte', h, Wv)
            scores = torch.einsum('bhqe,bhke->bhqk', q, k) * scale
            scores = torch.where(mask[None, None], scores, -1000000000.0)
            p = _softmax(scores, axis=-1)
            o = torch.einsum('bhqk,bhke->bhqe', p, v)
            o = torch.einsum('bhte,hed->btd', o, Wo)
            mem = o[:, :M, :].clone()
            outs.append(o[:, M:, :])
        return torch.concatenate(outs, axis=1)

    def _B_ref(x, w_gate, w_up, w_down):
        return _gelu(x @ w_gate) * (x @ w_up) @ w_down
    x = A_x
    xn = _layernorm(x, axis=-1)
    s = _A_ref(xn, A_mem0, A_Wq, A_Wk, A_Wv, A_Wo, A_seg_len)
    g = _silu(_B_ref(xn, B_w_gate, B_w_up, B_w_down))
    return x + s * g
```

```python
import re

TRANS = ("v_exp_f32","v_log_f32","v_rcp_f32","v_rsq_f32","v_sqrt_f32","v_sin_f32","v_cos_f32")
_reg_re = re.compile(r"^(-?)(abs\()?([vas])(\d+|\[(\d+):(\d+)\])\)?$")

def regs_of(tok):
    tok = tok.strip()
    if tok in ("vcc",): return {("s","vcc")}
    if tok in ("vcc_lo","vcc_hi"): return {("s","vcc")}
    if tok == "exec": return {("s","exec")}
    if tok == "m0": return {("s","m0")}
    m = _reg_re.match(tok)
    if not m: return set()
    k = m.group(3)
    if m.group(5) is not None:
        return {(k,i) for i in range(int(m.group(5)), int(m.group(6))+1)}
    return {(k,int(m.group(4)))}

def split_ops(s):
    out=[]; depth=0; cur=""
    for ch in s:
        if ch in "[(": depth+=1
        if ch in "])": depth-=1
        if ch=="," and depth==0:
            out.append(cur.strip()); cur=""
        else: cur+=ch
    if cur.strip(): out.append(cur.strip())
    return out

class Ins:
    def __init__(self, text):
        self.text = text
        t = text.split(";")[0].strip()
        parts = t.split(None,1)
        self.op = parts[0]
        rest = parts[1] if len(parts)>1 else ""
        ops = split_ops(rest)
        mods = ""
        if ops:
            l = ops[-1].split(None,1)
            ops[-1] = l[0]
            mods = l[1] if len(l)>1 else ""
        self.ops = ops; self.mods = mods
        op = self.op
        self.kind = "other"
        self.w=set(); self.r=set(); self.rc=set(); self.rab=set()
        self.passes = 0
        R = lambda i: regs_of(ops[i]) if i < len(ops) else set()
        if op.startswith("v_mfma") or op.startswith("v_smfmac"):
            self.kind="xdl"
            self.passes = 8 if "32x32" in op else 4
            self.w = R(0)
            if op.startswith("v_smfmac"):
                self.rc = R(0); self.rab = R(1)|R(2)|R(3)
            else:
                self.rc = R(3); self.rab = R(1)|R(2)
            self.r = self.rc|self.rab
        elif op.startswith("v_"):
            self.kind="valu"
            if op.startswith("v_cmp"):
                self.w=R(0); self.r=R(1)|R(2)
            elif op.startswith("v_permlane"):
                self.w=R(0)|R(1); self.r=R(0)|R(1)
            elif op.startswith("v_add_co") or op.startswith("v_addc_co") or op.startswith("v_sub_co"):
                self.w=R(0)|R(1); self.r=set().union(*[R(i) for i in range(2,len(ops))])
            else:
                self.w=R(0); self.r=set().union(*[R(i) for i in range(1,len(ops))]) if len(ops)>1 else set()
                if op.startswith("v_fmac") or op.startswith("v_dot2c") or op.startswith("v_writelane") or op.startswith("v_pk_fmac"):
                    self.r |= R(0)
                if op.startswith("v_cndmask") and len(ops)==3: self.r |= {("s","vcc")}
                if "dpp" in op or "row_" in mods or "quad_perm" in mods:
                    self.r |= R(0)
        elif op.startswith("ds_"):
            self.kind="ds"
            if op.startswith("ds_read") or op.startswith("ds_bpermute") or op.startswith("ds_permute") or op.startswith("ds_swizzle"):
                self.w=R(0); self.r=set().union(*[R(i) for i in range(1,len(ops))])
            else:
                self.r=set().union(*[R(i) for i in range(0,len(ops))])
        elif op.startswith("buffer_") or op.startswith("global_"):
            self.kind="vmem"
            allr=set().union(*[R(i) for i in range(0,len(ops))]) if ops else set()
            if "lds" in mods.split() or "_lds_" in op:
                self.r=allr|{("s","m0")}
            elif "_load" in op:
                self.w=R(0); self.r=set().union(*[R(i) for i in range(1,len(ops))])
            elif "atomic" in op:
                self.r=allr
                if "sc0" in mods.split(): self.w=R(0)
            else:
                self.r=allr
            self.wide_store = ("_store_dwordx4" in op or "_store_dwordx3" in op)
            self.store_data = set()
            if self.wide_store:
                self.store_data = R(0) if op.startswith("buffer_") else R(1)
        elif op.startswith("s_"):
            self.kind="salu"
            if op in ("s_nop","s_waitcnt","s_barrier","s_sleep","s_setprio","s_endpgm","s_branch") or op.startswith("s_cbranch"):
                pass
            elif op.startswith("s_cmp") or op.startswith("s_bitcmp"):
                self.r=R(0)|R(1)
            else:
                self.w=R(0); self.r=set().union(*[R(i) for i in range(1,len(ops))]) if len(ops)>1 else set()
                if "saveexec" in op: self.w |= {("s","exec")}
        self.is_dpp = self.kind=="valu" and ("dpp" in op or "row_" in mods or "quad_perm" in mods)
        self.is_trans = op.replace("_e32","").replace("_e64","") in TRANS
        self.states = (int(ops[0],0)+1) if op=="s_nop" else 1

def required(p, c):
    need=0
    vec = lambda s: {x for x in s if x[0] in "va"}
    sc = lambda s: {x for x in s if x[0]=="s"}
    if p.kind=="valu":
        pw=vec(p.w)
        if c.kind=="xdl" and pw & c.r: need=max(need,2)
        if c.kind=="valu":
            if c.op.startswith("v_permlane") and pw & c.r: need=max(need,2)
            if c.is_dpp and pw & c.r: need=max(need,2)
            if (c.op.startswith("v_readlane") or c.op.startswith("v_readfirstlane")) and pw & c.r: need=max(need,1)
            if p.is_trans and not c.is_trans and pw & c.r: need=max(need,1)
            if sc(p.w) & sc(c.r): need=max(need, 4 if c.op.startswith(("v_readlane","v_writelane")) else 2)
        if c.kind=="vmem" and sc(p.w) & sc(c.r): need=max(need,5)
        if p.is_trans and c.kind in("ds","vmem") and pw & c.r: need=max(need,1)
    if p.kind=="xdl":
        n = p.passes
        if c.kind=="xdl":
            if p.w & c.rab: need=max(need, {4:8,8:12}[n])
            if p.w & c.rc:
                same = (p.w==c.rc and p.passes==c.passes and p.op.split("_")[3]==c.op.split("_")[3] and p.op.split("_")[1]==c.op.split("_")[1])
                if not same: need=max(need,{4:6,8:10}[n])
            elif p.w & c.w:
                need=max(need,{4:6,8:10}[n])
        elif c.kind in ("valu",):
            if p.w & (c.r|c.w): need=max(need,{4:8,8:12}[n])
            if p.rc & c.w: need=max(need,{4:3,8:7}[n])
        elif c.kind in ("ds","vmem"):
            if p.w & (c.r|c.w): need=max(need,{4:8,8:12}[n])
    if p.kind=="vmem" and getattr(p,"wide_store",False):
        if c.kind=="valu" and p.store_data & c.w: need=max(need,2)
        elif c.kind in("ds","vmem","xdl") and p.store_data & c.w: need=max(need,1)
    if p.kind=="salu" and ("s","m0") in p.w and c.kind=="vmem" and ("s","m0") in c.r: need=max(need,1)
    return need

class Asm:
    def __init__(self):
        self.lines=[]
    def __call__(self, text):
        for l in text.split("\n"):
            l=l.strip()
            if l: self.lines.append(l)
    def label(self, name): self.lines.append(name+":")
    def text(self):
        return "\n".join(("" if l.endswith(":") else "    ")+l for l in self.lines)+"\n"
    def mark(self): return len(self.lines)

def check_seq(lines, name="", fix=False, window=24):
    out=[]; ins=[]; errs=0
    for l in lines:
        t=l.split(";")[0].strip()
        if not t or t.endswith(":") or t.startswith("."):
            out.append(l); continue
        c=Ins(t)
        dist=0; lack=0; worst=None
        for p in reversed(ins[-window:]):
            need=required(p,c)
            if need>dist and need-dist>lack:
                lack=need-dist; worst=p
            dist+=p.states
            if dist>=20: break
        if lack>0:
            if fix:
                k=lack
                while k>0:
                    n=min(k,16); nop=f"s_nop {n-1}"; out.append(nop); ins.append(Ins(nop)); k-=n
            else:
                errs+=1
                print(f"HAZARD[{name}]: '{worst.text}' -> '{c.text}' lacks {lack}")
        out.append(l); ins.append(c)
    return out if fix else errs
```

```python
WS_SIZE  = 0x10000000
WS_FLAGS = 0x0000000
WS_PART  = 0x0010000
PART_SLOT= 0x48000
WS_MEMX  = 0x00F0000
MEM_SLOT = 0x4000
WS_STAMP = 0x0880000
WS_XN    = 0x0100000
WS_KX    = 0x1000000
WS_VX    = 0x2000000
WS_QX    = 0x3000000
WS_KM    = 0x4000000
WS_VM    = 0x4800000
WS_H     = 0x5000000
WS_O     = 0x7000000
FL_KVM   = 0x0000
FL_CNT   = 0x1000
FL_LN    = FL_CNT + 0x0000
FL_KV    = FL_CNT + 0x0400
FL_Q     = FL_CNT + 0x0800
FL_H     = FL_CNT + 0x0C00
FL_O     = FL_CNT + 0x1000
FL_CNT_BYTES = 0x3000
DB_ROLE, DB_LNQ, DB_INIT, DB_P23, DB_G1Q, DB_TAB = 0, 4, 8, 64, 32, 128
```

```python
from emit import *
from layout import *
from rec import Q, vr, srd, f2u, S_WS, S_WQ, S_WK, S_WV, S_WO, S_M0, S_DBG
S_X, S_WG, S_WU, S_WD, S_OUT, S_CUR = 36, 40, 44, 48, 52, 56
sW, sXCC = 60, 62
t0,t1,t2,t3,t4,t5,t6,t7 = 64,65,66,67,68,69,70,71
WS = srd(S_WS); DBG = srd(S_DBG)

def wg_atomic(a, off, dst, tag, buf=DBG, soff="0", inc=1):
    a(f"""
    s_barrier
    s_cmp_lg_u32 s{sW}, 0
    s_cbranch_scc1 Lat_{tag}
    v_mov_b32 v1, {inc}
    v_mov_b32 v2, 0
    s_mov_b64 exec, 1
    buffer_atomic_add v1, v2, {buf}, {soff} offen offset:{off} sc0
    s_waitcnt vmcnt(0)
    ds_write_b32 v2, v1
    s_mov_b64 exec, -1
    s_waitcnt lgkmcnt(0)
Lat_{tag}:
    s_barrier
    v_mov_b32 v2, 0
    ds_read_b32 v1, v2
    s_waitcnt lgkmcnt(0)
    v_readfirstlane_b32 s{dst}, v1
    s_barrier
    """)

def signal(a, soff, tag):
    a(f"""
    s_waitcnt vmcnt(0)
    s_barrier
    s_cmp_lg_u32 s{sW}, 0
    s_cbranch_scc1 Lsg_{tag}
    v_mov_b32 v1, 1
    v_mov_b32 v2, 0
    s_mov_b64 exec, 1
    buffer_atomic_add v1, v2, {WS}, s{soff} offen
    s_mov_b64 exec, -1
Lsg_{tag}:
    """)

def wait_ge(a, buf, soff, val, tag, tmp=t7, sleep=4, voff=None):
    a(f"""
    s_mov_b32 s{tmp}, 0x800000
    v_mov_b32 v2, 0
Lw_{tag}:
    buffer_load_dword v1, v2, {buf}, {soff} offen sc1
    s_sub_u32 s{tmp}, s{tmp}, 1
    s_cbranch_scc1 Lwd_{tag}
    s_waitcnt vmcnt(0)
    v_cmp_gt_u32 vcc, {val}, v1
    s_cbranch_vccz Lwd_{tag}
    s_sleep {sleep}
    s_branch Lw_{tag}
Lwd_{tag}:
    s_waitcnt vmcnt(0)
    """)

def rne_bf16(a, r, tmp):
    a(f"v_cvt_pk_bf16_f32 v{r}, v{r}, v{r}")
    a(f"v_and_b32 v{r}, 0xffff0000, v{r}")

def ln_task(a):
    X0 = 16
    a(f"""
    v_and_b32 v3, 63, v0
    v_and_b32 v4, 15, v3
    v_mul_u32_u24 v4, 1152, v4
    v_lshrrev_b32 v5, 4, v3
    v_lshl_add_u32 v4, v5, 4, v4          ; t*1152 + g*16
    v_lshlrev_b32 v5, 4, v3               ; lane*16
    s_lshl_b32 s{t1}, s{t0}, 2
    s_add_u32 s{t1}, s{t1}, s{sW}
    s_mul_i32 s{t2}, s{t1}, {16*1152}
    s_mul_i32 s{t3}, s{t1}, {18*1024}
    s_add_u32 s{t3}, s{t3}, {WS_XN}
    """)
    for ks in range(18):
        a(f"buffer_load_dwordx4 {vr(X0+4*ks)}, v4, {srd(S_X)}, s{t2} offen offset:{ks*64}")
    F = 96
    a("v_mov_b32 v6, 0\nv_mov_b32 v7, 0")
    for ks in range(18):
        a(f"s_waitcnt vmcnt({17-ks})")
        for j in range(4):
            s = X0+4*ks+j; d = F+8*ks+2*j
            a(f"v_lshlrev_b32 v{d}, 16, v{s}")
            a(f"v_and_b32 v{d+1}, 0xffff0000, v{s}")
            a(f"v_add_f32 v6, v6, v{d}")
            a(f"v_add_f32 v7, v7, v{d+1}")
    def xsum(r):
        a(f"""
        v_mov_b32 v9, v{r}
        s_nop 1
        v_permlane16_swap_b32 v{r}, v9
        v_add_f32 v{r}, v{r}, v9
        v_mov_b32 v9, v{r}
        s_nop 1
        v_permlane32_swap_b32 v{r}, v9
        v_add_f32 v{r}, v{r}, v9
        """)
    a("v_add_f32 v6, v6, v7")
    xsum(6)
    a(f"v_mul_f32 v6, {f2u(1.0/576):#x}, v6")
    a("v_mov_b32 v7, 0\nv_mov_b32 v8, 0")
    for i in range(0,144,2):
        a(f"v_sub_f32 v10, v{F+i}, v6")
        a(f"v_sub_f32 v11, v{F+i+1}, v6")
        a(f"v_fmac_f32 v7, v10, v10")
        a(f"v_fmac_f32 v8, v11, v11")
    a("v_add_f32 v7, v7, v8")
    xsum(7)
    a(f"v_mul_f32 v7, {f2u(1.0/576):#x}, v7")
    rne_bf16(a, 6, 9); rne_bf16(a, 7, 9)
    a(f"v_add_f32 v7, {f2u(1e-5):#x}, v7")
    rne_bf16(a, 7, 9)
    a("v_sqrt_f32 v7, v7\ns_nop 0")
    rne_bf16(a, 7, 9)
    a("v_rcp_f32 v8, v7\ns_nop 0")
    for ks in range(18):
        for j in range(4):
            d = F+8*ks+2*j; o = X0+4*ks+j
            a(f"v_sub_f32 v{d}, v{d}, v6")
            a(f"v_sub_f32 v{d+1}, v{d+1}, v6")
            a(f"v_cvt_pk_bf16_f32 v10, v{d}, v{d+1}")
            a(f"v_lshlrev_b32 v{d}, 16, v10")
            a(f"v_and_b32 v{d+1}, 0xffff0000, v10")
            a(f"v_mul_f32 v{d}, v{d}, v8")
            a(f"v_mul_f32 v{d+1}, v{d+1}, v8")
            a(f"v_cvt_pk_bf16_f32 v{o}, v{d}, v{d+1}")
        if ks % 4 == 0: a(f"s_add_u32 s{t2}, s{t3}, {ks*1024}")
        a(f"buffer_store_dwordx4 {vr(X0+4*ks)}, v5, {WS}, s{t2} offen offset:{(ks%4)*1024} sc1")

NSLOT = 5
def gemm1_task(a, tag):
    sRB, sCT, sKIND, sActO, sWO, sStr, sOutO, sM0a, sM0w, sTmp, sCnt = 72,73,74,75,76,77,78,79,80,81,82
    vL16, vDW, vRa, vRw0, vRw1, vTa, vTw0, vTw1 = 3,4,5,6,7,8,9,10
    a(f"""
    s_mov_b32 s{sRB}, s{t0}
    s_mov_b32 s{sCT}, s{t1}
    v_and_b32 v11, 63, v0
    v_lshlrev_b32 v{vL16}, 4, v11
    s_lshr_b32 s{t2}, s{sW}, 1
    s_and_b32 s{t3}, s{sW}, 1
    s_cmp_ge_u32 s{sCT}, 48
    s_cbranch_scc1 Lg1_gu_{tag}
    s_mov_b32 s{sStr}, 8192
    s_cmp_ge_u32 s{sCT}, 32
    s_cbranch_scc1 Lg1_q_{tag}
    s_and_b32 s{sKIND}, s{sCT}, 1
    s_lshr_b32 s{t4}, s{sCT}, 1
    s_cmp_eq_u32 s{sKIND}, 0
    s_cselect_b32 s{S_CUR}, s{S_WK}, s{S_WV}
    s_cselect_b32 s{S_CUR+1}, s{S_WK+1}, s{S_WV+1}
    s_add_u32 s{sOutO}, s{sKIND}, 1
    s_lshl_b32 s{sOutO}, s{sOutO}, 24
    s_mov_b32 s{sCnt}, {WS_FLAGS+FL_KV}
    s_branch Lg1_kvq_{tag}
Lg1_q_{tag}:
    s_mov_b32 s{sKIND}, 2
    s_sub_u32 s{t4}, s{sCT}, 32
    s_mov_b32 s{S_CUR}, s{S_WQ}
    s_mov_b32 s{S_CUR+1}, s{S_WQ+1}
    s_mov_b32 s{sOutO}, {WS_QX}
    s_mov_b32 s{sCnt}, {WS_FLAGS+FL_Q}
Lg1_kvq_{tag}:
    s_mov_b32 s{S_CUR+2}, {576*8192}
    s_lshl_b32 s{sWO}, s{t4}, 9
    s_lshl_b32 s{t5}, s{t2}, 8
    s_add_u32 s{sWO}, s{sWO}, s{t5}
    s_lshl_b32 s{t5}, s{t4}, 1
    s_add_u32 s{t5}, s{t5}, s{t3}
    s_lshl_b32 s{t5}, s{t5}, 13
    s_add_u32 s{sOutO}, s{sOutO}, s{t5}
    s_lshl_b32 s{t5}, s{sRB}, 1
    s_add_u32 s{t5}, s{t5}, s{t2}
    s_lshl_b32 s{t5}, s{t5}, 20
    s_add_u32 s{sOutO}, s{sOutO}, s{t5}
    s_lshl_b32 s{t5}, s{t3}, 13
    s_add_u32 s{t6}, s{t5}, 128
    s_branch Lg1_dec_{tag}
Lg1_gu_{tag}:
    s_mov_b32 s{sKIND}, 3
    s_mov_b32 s{sStr}, 9216
    s_sub_u32 s{t4}, s{sCT}, 48
    s_cmp_eq_u32 s{t2}, 0
    s_cselect_b32 s{S_CUR}, s{S_WG}, s{S_WU}
    s_cselect_b32 s{S_CUR+1}, s{S_WG+1}, s{S_WU+1}
    s_mov_b32 s{S_CUR+2}, {576*9216}
    s_lshl_b32 s{sWO}, s{t4}, 8
    s_mov_b32 s{sCnt}, {WS_FLAGS+FL_H}
    s_lshl_b32 s{t5}, s{sRB}, 1
    s_add_u32 s{t5}, s{t5}, s{t2}
    s_mul_i32 s{sOutO}, s{t5}, {4*2*144*1024}
    s_lshl_b32 s{t5}, s{t4}, 1
    s_add_u32 s{t5}, s{t5}, s{t3}
    s_lshl_b32 s{t5}, s{t5}, 11
    s_add_u32 s{sOutO}, s{sOutO}, s{t5}
    s_add_u32 s{sOutO}, s{sOutO}, {WS_H}
    s_lshl_b32 s{t5}, s{t3}, 7
    s_add_u32 s{t6}, s{t5}, 8192
Lg1_dec_{tag}:
    s_mov_b32 s{S_CUR+3}, 0x20000
    s_lshl_b32 s{sTmp}, s{sRB}, 7
    s_add_u32 s{sCnt}, s{sCnt}, s{sTmp}
    v_lshrrev_b32 v12, 4, v11
    s_lshl_b32 s{sTmp}, s{t3}, 2
    v_or_b32 v13, s{sTmp}, v12
    v_lshlrev_b32 v13, 1, v13
    v_and_b32 v14, 15, v11
    v_xor_b32 v13, v13, v14
    s_lshl_b32 s{sTmp}, s{t3}, 3
    v_add_u32 v12, s{sTmp}, v12
    v_mul_lo_u32 v12, v12, s{sStr}
    v_lshl_add_u32 v{vDW}, v13, 4, v12
    v_lshrrev_b32 v12, 4, v11             ; g
    v_bfe_u32 v13, v11, 2, 2              ; r
    v_and_b32 v14, 3, v11                 ; c
    v_lshl_add_u32 v15, v12, 3, v13
    v_lshlrev_b32 v15, 8, v15
    v_lshl_add_u32 v15, v14, 3, v15
    v_and_b32 v12, 1, v12
    v_lshl_add_u32 v13, v12, 2, v13       ; f
    v_lshl_add_u32 v15, v13, 5, v15
    v_xor_b32 v{vRw0}, s{t5}, v15
    v_xor_b32 v{vRw1}, s{t6}, v15
    s_lshl_b32 s{sTmp}, s{t2}, 13
    v_add_u32 v{vRa}, s{sTmp}, v{vL16}
    s_lshl_b32 s{sActO}, s{sRB}, 4
    s_lshl_b32 s{sTmp}, s{sW}, 2
    s_add_u32 s{sActO}, s{sActO}, s{sTmp}
    s_mul_i32 s{sActO}, s{sActO}, {18*1024}
    s_add_u32 s{sActO}, s{sActO}, {WS_XN}
    s_lshl_b32 s{sM0a}, s{sW}, 12
    s_lshl_b32 s{sM0w}, s{t2}, 13
    s_lshl_b32 s{sTmp}, s{t3}, 11
    s_add_u32 s{sM0w}, s{sM0w}, s{sTmp}
    s_add_u32 s{sM0w}, s{sM0w}, 16384
    s_lshl_b32 s{t2}, s{sStr}, 2          ; 4 rows
    s_lshl_b32 s{t3}, s{sStr}, 4          ; 16 rows
    s_lshl_b32 s{t4}, s{sStr}, 5          ; 32 rows
    """)
    vm = Q(a,"vmcnt",63); lg = Q(a,"lgkmcnt",15)
    def dma_w(ks):
        base = (ks % NSLOT)*32768
        g = []
        for n,(row,lo) in enumerate(((None,0),(t2,1024),(t3,4096),("x",5120))):
            off = {0:f"s_mov_b32 s{sTmp}, s{sWO}", 1:f"s_add_u32 s{sTmp}, s{sWO}, s{t2}", 2:f"s_add_u32 s{sTmp}, s{sWO}, s{t3}", 3:f"s_add_u32 s{sTmp}, s{sTmp}, s{t2}"}[n]
            l = [f"s_add_u32 m0, s{sM0w}, {base+lo}", off, f"buffer_load_dwordx4 v{vDW}, {srd(S_CUR)}, s{sTmp} offen lds"]
            if n==3: l.append(f"s_add_u32 s{sWO}, s{sWO}, s{t4}")
            g.append(l)
        return g
    def dma_a(ks):
        base = (ks % NSLOT)*32768
        return [[f"s_add_u32 m0, s{sM0a}, {base + i*1024}", f"s_add_u32 s{sTmp}, s{sActO}, {i*18*1024 + ks*1024}",
                 f"buffer_load_dwordx4 v{vL16}, {WS}, s{sTmp} offen sc1 lds"] for i in range(4)]
    for ks in range(4):
        for gl in dma_w(ks):
            for l in gl: a(l)
    a(f"s_lshl_b32 s{sTmp}, s{sRB}, 7\ns_add_u32 s{t5}, s{sTmp}, {WS_FLAGS+FL_LN}")
    wait_ge(a, WS, f"s{t5}", 4, "ln"+tag)
    for ks in range(4):
        for gl in dma_a(ks):
            for l in gl: a(l)
    FA = [128, 192]
    vX = 16
    def wreads(ks):
        base = (ks % NSLOT)*32768 + 16384; F = FA[ks&1]
        out = []
        for i in range(8):
            for jj in range(2):
                out.append(f"ds_read_b64_tr_b16 {vr(F+32+4*i+2*jj,2)}, v{vX+i} offset:{jj*1024}")
        return out
    for i in range(8):
        a(f"v_xor_b32 v{vX+8+i}, {(i&3)*32}, v{vRw0 if i<4 else vRw1}")
    def addr(ks):
        base = (ks % NSLOT)*32768
        return [f"v_add_u32 v{vTa}, {base}, v{vRa}"] + [f"v_add_u32 v{vX+i}, {base+16384}, v{vX+8+i}" for i in range(8)]
    def areads(ks):
        F = FA[ks&1]
        return [f"ds_read_b128 {vr(F+4*j)}, v{vTa} offset:{j*1024}" for j in range(8)]
    acc = lambda i,j: f"a[{4*(8*i+j)}:{4*(8*i+j)+3}]"
    def mainloop(actA):
        a("s_waitcnt vmcnt(12)")
        a("s_barrier")
        for l in addr(0)+areads(0)+wreads(0): a(l)
        for ks in range(18):
            F = FA[ks&1]
            rem = min(ks+3,17) - (ks+1)
            if ks < 17:
                n = 8*max(0, min(ks+3,17)-3) + 4*max(0, 3-(ks+1)) if ks+1 <= 3 else 8*rem
                a(f"s_waitcnt vmcnt({n}) lgkmcnt(0)")
                a("s_barrier")
            else:
                a("s_waitcnt lgkmcnt(0)")
            fill = []
            if ks < 17:
                ad = addr(ks+1); ar = areads(ks+1); wr = wreads(ks+1)
                fill += [[l] for l in ad[:1]] + [[ar[0], ad[1]]] + [[ar[j], ad[j+1]] for j in range(1,8)] + [[l] for l in wr]
            if ks+4 < 18:
                fill += dma_w(ks+4) + dma_a(ks+4)
            n = 0
            for i in range(8):
                for j in range(8):
                    W_, A_ = vr(F+32+4*i), vr(F+4*j)
                    s0, s1 = (A_, W_) if actA else (W_, A_)
                    a(f"v_mfma_f32_16x16x32_bf16 {acc(i,j)}, {s0}, {s1}, {'0' if ks==0 else acc(i,j)}")
                    if fill and n % 2 == 0 or (fill and len(fill) > (64-n)//2):
                        for l in fill.pop(0): a(l)
                    n += 1
            assert not fill
        a("s_nop 7")
    T = 32
    def rd(dst, i, j):
        for r in range(4): a(f"v_accvgpr_read_b32 v{dst+r}, a{4*(8*i+j)+r}")
    def epi_kq():
        n = 0
        for j in range(8):
            for wq in range(4):
                b = T + 12*(n%4); n += 1
                rd(b, 2*wq, j); rd(b+4, 2*wq+1, j)
                if wq % 2 == 0: a(f"s_add_u32 s{sTmp}, s{sOutO}, {(j>>1)*0x40000 + (wq>>1)*4096}")
                for r in range(4): a(f"v_cvt_pk_bf16_f32 v{b+8+r}, v{b+2*r}, v{b+2*r+1}")
                a(f"buffer_store_dwordx4 {vr(b+8)}, v{vL16}, {WS}, s{sTmp} offen offset:{(wq&1)*2048 + (j&1)*1024} sc1")
    def epi_v():
        n = 0
        for sg in range(4):
            for i in range(8):
                b = T + 12*(n%4); n += 1
                rd(b, i, 2*sg); rd(b+4, i, 2*sg+1)
                if i % 4 == 0: a(f"s_add_u32 s{sTmp}, s{sOutO}, {sg*0x40000 + (i>>2)*4096}")
                for r in range(4): a(f"v_cvt_pk_bf16_f32 v{b+8+r}, v{b+2*r}, v{b+2*r+1}")
                a(f"buffer_store_dwordx4 {vr(b+8)}, v{vL16}, {WS}, s{sTmp} offen offset:{(i&3)*1024} sc1")
    def epi_gu():
        k0 = -2.0*0.7978845608028654*1.4426950408889634
        a(f"s_mov_b32 s{t2}, {f2u(k0):#x}\ns_mov_b32 s{t3}, {f2u(k0*0.044715):#x}")
        a(f"v_mov_b32 v30, s{t2}\nv_mov_b32 v31, s{t2}\nv_mov_b32 v28, s{t3}\nv_mov_b32 v29, s{t3}\nv_mov_b32 v26, 1.0\nv_mov_b32 v27, 1.0")
        n = 0
        for j in range(8):
            a(f"s_add_u32 s{sTmp}, s{sOutO}, {j*144*1024}")
            for p in range(2):
                b = T + 32*(n%2); n += 1
                G, U, Z_, O_ = b, b+8, b+16, b+24
                rd(G, 2*p, j); rd(G+4, 2*p+1, j); rd(U, 4+2*p, j); rd(U+4, 5+2*p, j)
                for r in range(0,8,2): a(f"v_pk_mul_f32 {vr(Z_+r,2)}, {vr(G+r,2)}, {vr(G+r,2)}")
                for r in range(0,8,2): a(f"v_pk_fma_f32 {vr(Z_+r,2)}, {vr(Z_+r,2)}, v[28:29], v[30:31]")
                for r in range(0,8,2): a(f"v_pk_mul_f32 {vr(Z_+r,2)}, {vr(Z_+r,2)}, {vr(G+r,2)}")
                for r in range(8): a(f"v_exp_f32 v{Z_+r}, v{Z_+r}")
                for r in range(0,8,2): a(f"v_pk_mul_f32 {vr(G+r,2)}, {vr(G+r,2)}, {vr(U+r,2)}")
                for r in range(0,8,2): a(f"v_pk_add_f32 {vr(Z_+r,2)}, {vr(Z_+r,2)}, v[26:27]")
                for r in range(8): a(f"v_rcp_f32 v{Z_+r}, v{Z_+r}")
                a("s_nop 0")
                for r in range(0,8,2): a(f"v_pk_mul_f32 {vr(G+r,2)}, {vr(G+r,2)}, {vr(Z_+r,2)}")
                for r in range(4): a(f"v_cvt_pk_bf16_f32 v{O_+r}, v{G+2*r}, v{G+2*r+1}")
                a(f"buffer_store_dwordx4 {vr(O_)}, v{vL16}, {WS}, s{sTmp} offen offset:{p*1024} sc1")
    a(f"s_cmp_eq_u32 s{sKIND}, 1\ns_cbranch_scc1 Lg1_vloop_{tag}")
    mainloop(False)
    a(f"s_cmp_eq_u32 s{sKIND}, 3\ns_cbranch_scc1 Lg1_egu_{tag}")
    epi_kq()
    a(f"s_branch Lg1_end_{tag}")
    a.label(f"Lg1_egu_{tag}")
    epi_gu()
    a(f"s_branch Lg1_end_{tag}")
    a.label(f"Lg1_vloop_{tag}")
    mainloop(True)
    epi_v()
    a.label(f"Lg1_end_{tag}")
    signal(a, sCnt, "g1"+tag)


def p23_role(a):
    sG, sSL, sSEG, sTmp, sSrc, sI, sHd, sQT, sPar, sT2, sC = 72,73,74,75,76,77,78,79,80,81,82
    vL16, vD, vTr, vOut, vRed = 3,4,5,6,7
    GR = 8
    ACC = 20
    BUF = 64
    a(f"""
    s_mul_hi_u32 s{sG}, s{t0}, {(2**32+17)//18}
    s_mul_i32 s{sTmp}, s{sG}, 18
    s_sub_u32 s{sSL}, s{t0}, s{sTmp}
    v_and_b32 v11, 63, v0
    v_lshlrev_b32 v{vL16}, 4, v11
    v_lshrrev_b32 v12, 2, v11
    v_mul_u32_u24 v12, 1152, v12
    v_and_b32 v13, 3, v11
    v_lshl_add_u32 v{vD}, v13, 4, v12
    v_lshrrev_b32 v12, 2, v11
    v_lshlrev_b32 v12, 6, v12
    v_lshl_add_u32 v12, v13, 3, v12
    s_mul_i32 s{sTmp}, s{sW}, 40960
    v_add_u32 v{vTr}, s{sTmp}, v12
    v_and_b32 v12, 15, v11
    s_and_b32 s{sTmp}, s{sW}, 1
    s_lshl_b32 s{sTmp}, s{sTmp}, 4
    v_add_u32 v12, s{sTmp}, v12
    v_mul_u32_u24 v12, 1152, v12
    v_lshrrev_b32 v13, 4, v11
    v_lshl_add_u32 v12, v13, 3, v12
    s_lshl_b32 s{sTmp}, s{sSL}, 6
    s_lshr_b32 s{sT2}, s{sW}, 1
    s_lshl_b32 s{sT2}, s{sT2}, 5
    s_add_u32 s{sTmp}, s{sTmp}, s{sT2}
    v_add_u32 v{vOut}, s{sTmp}, v12
    s_mov_b32 s{sPar}, 0
    """)
    wreg = lambda ks,nt: (f"a[{8*ks+4*nt}:{8*ks+4*nt+3}]" if ks < 32 else vr(224+8*(ks-32)+4*nt))
    def load_slice(S, nk):
        a(f"""
        s_barrier
        s_mul_i32 s{sSrc}, s{sW}, {32*nk*1152}
        s_lshl_b32 s{sTmp}, s{sSL}, 6
        s_add_u32 s{sSrc}, s{sSrc}, s{sTmp}
        s_mul_i32 s{sT2}, s{sW}, 40960
        """)
        vm = Q(a,"vmcnt",63)
        def issue(ks):
            for hf in range(2):
                a(f"s_add_u32 m0, s{sT2}, {(ks%16)*2048 + hf*1024}")
                a(f"s_add_u32 s{sTmp}, s{sSrc}, {(ks*32+hf*16)*1152}")
                a(f"buffer_load_dwordx4 v{vD}, {srd(S)}, s{sTmp} offen lds"); vm.add(ks)
        for ks in range(16): issue(ks)
        for ks in range(nk):
            vm.wait(ks)
            for nt in range(2):
                for jj in range(2):
                    w_ = wreg(ks,nt); k_=w_[0]; b=int(w_[2:w_.index(":")])
                    a(f"ds_read_b64_tr_b16 {k_}[{b+2*jj}:{b+2*jj+1}], v{vTr} offset:{(ks%16)*2048 + jj*1024 + nt*32}")
            if ks+16 < nk:
                a("s_waitcnt lgkmcnt(0)"); issue(ks+16)
        a("s_waitcnt lgkmcnt(0)\ns_barrier")
    def gemm(nk, NK, tag):
        a(f"""
        s_mul_i32 s{sTmp}, s{sW}, {nk*1024}
        s_add_u32 s{sSrc}, s{sSrc}, s{sTmp}
        s_add_u32 s{sT2}, s{sSrc}, {NK*1024}
        """)
        vm = Q(a,"vmcnt",63)
        def issue(ks):
            if ks and ks % 4 == 0:
                a(f"s_add_u32 s{sSrc}, s{sSrc}, 4096\ns_add_u32 s{sT2}, s{sT2}, 4096")
            for tt in range(2):
                a(f"buffer_load_dwordx4 {vr(BUF+8*(ks%16)+4*tt)}, v{vL16}, {WS}, s{(sSrc,sT2)[tt]} offen offset:{(ks%4)*1024} sc1"); vm.add(ks)
        for ks in range(16): issue(ks)
        for ks in range(nk):
            vm.wait(ks)
            for nt in range(2):
                for tt in range(2):
                    d = vr(ACC+4*(2*nt+tt))
                    a(f"v_mfma_f32_16x16x32_bf16 {d}, {wreg(ks,nt)}, {vr(BUF+8*(ks%16)+4*tt)}, {'0' if ks==0 else d}")
            if ks+16 < nk: issue(ks+16)
        a(f"""
        s_lshl_b32 s{sTmp}, s{sW}, 12
        s_add_u32 s{sTmp}, s{sTmp}, s{sPar}
        v_add_u32 v{vRed}, s{sTmp}, v{vL16}
        s_nop 4
        """)
        for q in range(4): a(f"ds_write_b128 v{vRed}, {vr(ACC+4*q)} offset:{q*1024}")
        a(f"""
        s_lshl_b32 s{sTmp}, s{sW}, 10
        s_add_u32 s{sTmp}, s{sTmp}, s{sPar}
        v_add_u32 v{vRed}, s{sTmp}, v{vL16}
        s_xor_b32 s{sPar}, s{sPar}, 16384
        s_waitcnt lgkmcnt(0)
        s_barrier
        """)
        for q in range(4): a(f"ds_read_b128 {vr(ACC+4*q)}, v{vRed} offset:{q*4096}")
        a("s_waitcnt lgkmcnt(0)")
        for r in range(4):
            a(f"v_add_f32 v{ACC+r}, v{ACC+r}, v{ACC+4+r}")
            a(f"v_add_f32 v{ACC+8+r}, v{ACC+8+r}, v{ACC+12+r}")
        for r in range(4): a(f"v_add_f32 v{ACC+r}, v{ACC+r}, v{ACC+8+r}")
        a(f"v_cvt_pk_bf16_f32 v{ACC+4}, v{ACC}, v{ACC+1}\nv_cvt_pk_bf16_f32 v{ACC+5}, v{ACC+2}, v{ACC+3}")
        for r in range(2):
            a(f"v_lshlrev_b32 v{ACC+2*r}, 16, v{ACC+4+r}\nv_and_b32 v{ACC+2*r+1}, 0xffff0000, v{ACC+4+r}")
    load_slice(S_WD, 36)
    a(f"s_mov_b32 s{sSEG}, s{sG}\ns_mov_b32 s{sI}, 0")
    a.label("Lp2_loop")
    a(f"s_lshr_b32 s{sTmp}, s{sSEG}, 3\ns_lshl_b32 s{sTmp}, s{sTmp}, 7\ns_add_u32 s{sT2}, s{sTmp}, {WS_FLAGS+FL_H}")
    wait_ge(a, WS, f"s{sT2}", 36, "p2h")
    a(f"s_mul_i32 s{sSrc}, s{sSEG}, {2*144*1024}\ns_add_u32 s{sSrc}, s{sSrc}, {WS_H}")
    gemm(36, 144, "p2")
    for r in range(4): a(f"v_mul_f32 v{ACC+4+r}, {f2u(-1.4426950408889634):#x}, v{ACC+r}")
    for r in range(4): a(f"v_exp_f32 v{ACC+4+r}, v{ACC+4+r}")
    for r in range(4): a(f"v_add_f32 v{ACC+4+r}, 1.0, v{ACC+4+r}")
    for r in range(4): a(f"v_rcp_f32 v{ACC+4+r}, v{ACC+4+r}")
    for r in range(4): a(f"v_mul_f32 v{ACC+r}, v{ACC+r}, v{ACC+4+r}")
    a(f"v_cvt_pk_bf16_f32 v{ACC+4}, v{ACC}, v{ACC+1}\nv_cvt_pk_bf16_f32 v{ACC+5}, v{ACC+2}, v{ACC+3}")
    for r in range(0,10,2): a(f"v_mov_b64 {vr(GR+r,2)}, {vr(GR+r+2,2)}")
    a(f"v_mov_b64 {vr(GR+10,2)}, {vr(ACC+4,2)}")
    a(f"""
    s_add_u32 s{sSEG}, s{sSEG}, 12
    s_add_u32 s{sI}, s{sI}, 1
    s_cmp_lt_u32 s{sSEG}, 64
    s_cbranch_scc1 Lp2_loop
    s_cmp_eq_u32 s{sI}, 6
    s_cbranch_scc1 Lp2_done
    """)
    for r in range(0,10,2): a(f"v_mov_b64 {vr(GR+r,2)}, {vr(GR+r+2,2)}")
    a.label("Lp2_done")
    load_slice(S_WO, 32)
    a(f"""
    v_and_b32 v36, 15, v0
    v_lshlrev_b32 v37, 7, v36
    v_cmp_gt_u32 vcc, 8, v36
    v_mov_b32 v38, 16
    v_mov_b32 v39, 32
    v_cndmask_b32 v38, v38, v39, vcc
    s_mov_b32 s{sTmp}, {WS_FLAGS+FL_KV}
    s_mov_b32 s{t7}, 0x800000
Lp3_w1:
    buffer_load_dword v39, v37, {WS}, s{sTmp} offen sc1
    s_sub_u32 s{t7}, s{t7}, 1
    s_cbranch_scc1 Lp3_w1d
    s_waitcnt vmcnt(0)
    v_cmp_gt_u32 vcc, v38, v39
    s_cbranch_vccz Lp3_w1d
    s_sleep 4
    s_branch Lp3_w1
Lp3_w1d:
    v_and_b32 v36, 31, v0
    v_lshlrev_b32 v37, 2, v36
Lp3_w2:
    buffer_load_dword v39, v37, {DBG}, 0 offen offset:{DB_TAB} sc1
    s_sub_u32 s{t7}, s{t7}, 1
    s_cbranch_scc1 Lp3_w2d
    s_waitcnt vmcnt(0)
    v_cmp_eq_u32 vcc, 0, v39
    s_cbranch_vccz Lp3_w2d
    s_sleep 4
    s_branch Lp3_w2
Lp3_w2d:
    s_waitcnt vmcnt(0)
    s_lshl_b32 s{sTmp}, s{sSL}, 2
    s_add_u32 s{sTmp}, s{sTmp}, s{sW}
    s_lshr_b32 s{sHd}, s{sTmp}, 1
    s_and_b32 s{sQT}, s{sTmp}, 1
    s_mov_b32 s{sC}, {f2u(128**-0.5 * 1.4426950408889634):#x}
    s_mov_b32 s{sSEG}, s{sG}
    """)
    a.label("Lp3_loop")
    XR = 36
    a(f"s_mul_i32 s{sTmp}, s{sSEG}, {32*1152}")
    a(f"buffer_load_dwordx2 {vr(XR,2)}, v{vOut}, {srd(S_X)}, s{sTmp} offen")
    a(f"s_cmp_ge_u32 s{sHd}, 32\ns_cbranch_scc1 Lp3_noattn")
    QF, KF, VF, KM, VM = 64, 80, 112, 144, 160
    SX0, SX1, SM, PB, PM, OT = 40, 44, 48, 52, 56, 176
    a(f"""
    s_lshl_b32 s{sSrc}, s{sSEG}, 18
    s_lshl_b32 s{sTmp}, s{sHd}, 13
    s_add_u32 s{sSrc}, s{sSrc}, s{sTmp}
    s_lshl_b32 s{sT2}, s{sQT}, 10
    s_add_u32 s{sT2}, s{sT2}, s{sSrc}
    """)
    for hf in range(2):
        a(f"s_add_u32 s{sTmp}, s{sT2}, {WS_QX + hf*4096}")
        for i in range(2): a(f"buffer_load_dwordx4 {vr(QF+8*hf+4*i)}, v{vL16}, {WS}, s{sTmp} offen offset:{i*2048} sc1")
    for base,R in ((WS_KX,KF),(WS_VX,VF)):
        for hf in range(2):
            a(f"s_add_u32 s{sTmp}, s{sSrc}, {base + hf*4096}")
            for i in range(4): a(f"buffer_load_dwordx4 {vr(R+16*hf+4*i)}, v{vL16}, {WS}, s{sTmp} offen offset:{i*1024} sc1")
    a("s_waitcnt vmcnt(8)")
    for wq in range(4):
        for kt,S_ in ((0,SX0),(1,SX1)):
            a(f"v_mfma_f32_16x16x32_bf16 {vr(S_)}, {vr(KF+8*wq+4*kt)}, {vr(QF+4*wq)}, {'0' if wq==0 else vr(S_)}")
    a(f"""
    v_and_b32 v62, 63, v0
    v_lshrrev_b32 v38, 4, v62
    v_lshlrev_b32 v38, 2, v38
    v_and_b32 v39, 15, v62
    v_sub_u32 v38, v38, v39
    s_lshl_b32 s{sTmp}, s{sQT}, 4
    v_subrev_u32 v38, s{sTmp}, v38
    v_mov_b32 v39, 0xf149f2ca
    s_lshl_b32 s{sTmp}, s{sHd}, 7
    s_add_u32 s{sT2}, s{sTmp}, {WS_FLAGS+FL_KVM}
    s_add_u32 s{sI}, s{sSEG}, 1
    """)
    for kt,S_ in ((0,SX0),(1,SX1)):
        for r in range(4):
            a(f"v_cmp_ge_i32 vcc, {-(16*kt+r)}, v38" if 16*kt+r <= 16 else f"v_cmp_ge_i32 vcc, {(-(16*kt+r)) & 0xffffffff:#x}, v38")
            a("s_nop 1")
            a(f"v_cndmask_b32 v{S_+r}, v39, v{S_+r}, vcc")
    wait_ge(a, WS, f"s{sT2}", f"s{sI}", "p3kvm", sleep=2)
    a(f"""
    s_lshr_b32 s{sTmp}, s{sSrc}, 1
    s_add_u32 s{sT2}, s{sTmp}, {WS_KM}
    s_lshr_b32 s{sTmp}, s{sSrc}, 2
    s_add_u32 s{sTmp}, s{sTmp}, {WS_VM}
    v_lshrrev_b32 v38, 1, v{vL16}
    """)
    for i in range(4): a(f"buffer_load_dwordx4 {vr(KM+4*i)}, v{vL16}, {WS}, s{sT2} offen offset:{i*1024} sc1")
    for i in range(4): a(f"buffer_load_dwordx2 {vr(VM+2*i,2)}, v38, {WS}, s{sTmp} offen offset:{i*512} sc1")
    a(f"v_mov_b64 {vr(VM+8,2)}, 0")
    a(f"v_max3_f32 v60, v{SX0}, v{SX0+1}, v{SX0+2}\nv_max3_f32 v60, v60, v{SX0+3}, v{SX1}\nv_max3_f32 v60, v60, v{SX1+1}, v{SX1+2}\nv_max_f32 v60, v60, v{SX1+3}")
    for wq in range(4):
        a(f"s_waitcnt vmcnt({7-wq})")
        a(f"v_mfma_f32_16x16x32_bf16 {vr(SM)}, {vr(KM+4*wq)}, {vr(QF+4*wq)}, {'0' if wq==0 else vr(SM)}")
    a(f"s_nop 7\nv_max3_f32 v60, v60, v{SM}, v{SM+1}")
    def xred(op):
        for sw in ("16","32"):
            a(f"v_mov_b32 v61, v60\ns_nop 1\nv_permlane{sw}_swap_b32 v60, v61\n{op} v60, v60, v61")
    xred("v_max_f32")
    a(f"v_mul_f32 v60, s{sC}, v60")
    vals = [SX0+r for r in range(4)] + [SX1+r for r in range(4)] + [SM, SM+1]
    for r in vals: a(f"v_fma_f32 v{r}, v{r}, s{sC}, -v60")
    for r in vals: a(f"v_exp_f32 v{r}, v{r}")
    a(f"s_nop 0\nv_add_f32 v60, v{vals[0]}, v{vals[1]}")
    for r in vals[2:]: a(f"v_add_f32 v60, v60, v{r}")
    xred("v_add_f32")
    a("v_rcp_f32 v60, v60\ns_nop 0")
    for r in vals: a(f"v_mul_f32 v{r}, v{r}, v60")
    for r in range(4): a(f"v_cvt_pk_bf16_f32 v{PB+r}, v{SX0+2*r}, v{SX0+2*r+1}")
    a(f"v_mov_b64 {vr(PM+2,2)}, 0\nv_mov_b64 {vr(SX0+2,2)}, 0\nv_mov_b32 v{PM}, 0\nv_mov_b32 v{SX0+1}, 0")
    a(f"v_cvt_pk_bf16_f32 v{PM+1}, v{SM}, v{SM+1}\nv_cvt_pk_bf16_f32 v{SX0}, v{SM}, v{SM+1}")
    a("s_waitcnt vmcnt(0)")
    for et in range(8):
        a(f"v_mfma_f32_16x16x32_bf16 {vr(OT+4*et)}, {vr(VF+4*et)}, {vr(PB)}, 0")
    for et in range(8):
        a(f"v_mfma_f32_16x16x32_bf16 {vr(OT+4*et)}, {vr(VM+2*(et>>1))}, {vr(PM if et&1 else SX0)}, {vr(OT+4*et)}")
    a(f"""
    s_lshl_b32 s{sTmp}, s{sSEG}, 1
    s_add_u32 s{sTmp}, s{sTmp}, s{sQT}
    s_lshl_b32 s{sTmp}, s{sTmp}, 17
    s_lshl_b32 s{sT2}, s{sHd}, 12
    s_add_u32 s{sTmp}, s{sTmp}, s{sT2}
    s_add_u32 s{sTmp}, s{sTmp}, {WS_O}
    """)
    for wq in range(4):
        for r in range(4): a(f"v_cvt_pk_bf16_f32 v{QF+4*wq+r}, v{OT+8*wq+2*r}, v{OT+8*wq+2*r+1}")
        a(f"buffer_store_dwordx4 {vr(QF+4*wq)}, v{vL16}, {WS}, s{sTmp} offen offset:{wq*1024} sc1")
    a.label("Lp3_noattn")
    a(f"s_lshl_b32 s{sT2}, s{sSEG}, 7\ns_add_u32 s{sT2}, s{sT2}, {WS_FLAGS+FL_O}")
    signal(a, sT2, "p3o")
    wait_ge(a, WS, f"s{sT2}", 18, "p3o", sleep=1)
    a(f"s_lshl_b32 s{sSrc}, s{sSEG}, 18\ns_add_u32 s{sSrc}, s{sSrc}, {WS_O}")
    gemm(32, 128, "p3")
    for r in range(2):
        a(f"v_lshlrev_b32 v{ACC+4+2*r}, 16, v{GR+r}\nv_and_b32 v{ACC+5+2*r}, 0xffff0000, v{GR+r}")
        a(f"v_lshlrev_b32 v{ACC+8+2*r}, 16, v{XR+r}\nv_and_b32 v{ACC+9+2*r}, 0xffff0000, v{XR+r}")
    for r in range(4): a(f"v_mul_f32 v{ACC+r}, v{ACC+r}, v{ACC+4+r}")
    a(f"v_cvt_pk_bf16_f32 v{ACC+4}, v{ACC}, v{ACC+1}\nv_cvt_pk_bf16_f32 v{ACC+5}, v{ACC+2}, v{ACC+3}")
    for r in range(2):
        a(f"v_lshlrev_b32 v{ACC+2*r}, 16, v{ACC+4+r}\nv_and_b32 v{ACC+2*r+1}, 0xffff0000, v{ACC+4+r}")
    for r in range(4): a(f"v_add_f32 v{ACC+r}, v{ACC+r}, v{ACC+8+r}")
    a(f"v_cvt_pk_bf16_f32 v{ACC+4}, v{ACC}, v{ACC+1}\nv_cvt_pk_bf16_f32 v{ACC+5}, v{ACC+2}, v{ACC+3}")
    a(f"s_mul_i32 s{sTmp}, s{sSEG}, {32*1152}")
    a(f"buffer_store_dwordx2 {vr(ACC+4,2)}, v{vOut}, {srd(S_OUT)}, s{sTmp} offen")
    for r in range(0,10,2): a(f"v_mov_b64 {vr(GR+r,2)}, {vr(GR+r+2,2)}")
    a(f"""
    s_add_u32 s{sSEG}, s{sSEG}, 12
    s_cmp_lt_u32 s{sSEG}, 64
    s_cbranch_scc1 Lp3_loop
    """)
```

```python
from emit import *
from layout import *
import struct as _s

class Q:
    def __init__(s, a, name, mx): s.a=a; s.name=name; s.mx=mx; s.q=[]
    def add(s, tag): s.q.append(tag)
    def wait(s, tag):
        if tag not in s.q: return
        i = max(k for k,t in enumerate(s.q) if t==tag)
        n = len(s.q)-1-i
        n = min(n, s.mx)
        s.a(f"s_waitcnt {s.name}({n})")
        s.q = s.q[len(s.q)-n:] if n>0 else []
    def drain(s):
        s.a(f"s_waitcnt {s.name}(0)"); s.q=[]
    def clear(s): s.q=[]

def vr(b, n=4): return f"v[{b}:{b+n-1}]" if n>1 else f"v{b}"
def f2u(x): return _s.unpack("<I", _s.pack("<f", x))[0]

S_WS, S_WQ, S_WK, S_WV, S_WO, S_M0, S_DBG = 8,12,16,20,24,28,32
def srd(b): return f"s[{b}:{b+3}]"
sW, sH, sXCC, sSTEP = 60,61,62,63
sMEMR, sMEMW, sMEMA, sPARTW, sPARTX = 64,65,66,67,68
sTAG = 59
sKX, sVX, sKM, sVM, sRED, sBUD, sT0, sT1, sT2, sHC = 69,70,71,72,73,74,75,76,77,78
sFLG = 79
M_H0 = 80
sSW, sSMW, sOW, sC = 84, 85, 86, 87
sT3, sRM, sT4, sT5 = 88, 83, 82, 89
sL0 = 98
sFm, sKVR = 94, 91
sSTO = 90
MH0 = f"s[{M_H0}:{M_H0+1}]"
vA,vIdx,vR0,vR1,vW,vP,vF0,vRs,vF1,vQ = 0,1,2,3,4,5,6,7,8,9
vRl = vP
vAp = vA
vS, vT = 10, 11
AQ0,AQ1,AK0,AK1 = 12,16,20,24
A0,A1,A2,A3 = 28,32,36,40
L = 44
KX, VX, SEL = 60, 68, 76
X_OFF, SEL_OFF, SM_OFF, RSEL_OFF, SX_OFF, RES_OFF = 0, 9216, 10240, 11264, 12288, 16384

def frag_regs():
    pool = [f"a[{8*i}:{8*i+7}]" for i in range(32)] + [f"v[{80+8*i}:{80+8*i+7}]" for i in range(22)]
    names = []
    for p in range(8): names += [("q",p,0),("q",p,1)]
    for p in (0,2,4,6,8): names += [("k",p,0),("k",p,1)]
    for p in range(2,9): names += [("v",p,0),("v",p,1)]
    for c in range(7): names += [("o",c,0),("o",c,1)]
    assert len(names)==54
    return dict(zip(names,pool))
FR = frag_regs()
def sub(reg, off, n):
    k=reg[0]; b=int(reg[2:reg.index(":")]); return f"{k}[{b+off}:{b+off+n-1}]"

CHUNKS = [("q",i) for i in range(8)] + [("k",i) for i in (0,2,4,6,8)] + [("v",i) for i in range(2,9)] + [("o",i) for i in range(7)] \
       + [("q",8),("v",0),("v",1),("k",1),("k",3),("k",5),("k",7),("o",7),("o",8)]
assert len(CHUNKS)==36
SLOT_Q8, SLOT_V0, SLOT_O7, SLOT_O8 = 0,1,7,8

def rec_setup(a):
    a(f"""
    v_lshrrev_b32 v10, 6, v0
    s_nop 0
    v_readfirstlane_b32 s{sW}, v10
    v_and_b32 v11, 63, v0                 ; lane
    v_lshlrev_b32 v{vA}, 4, v11
    s_mov_b32 s{M_H0}, 0x33333333
    s_mov_b32 s{M_H0+1}, 0x33333333
    v_mov_b32 v12, 0xeeee
    v_mov_b32 v13, 0x4444
    v_cndmask_b32 v{vIdx}, v12, v13, {MH0}
    s_lshl_b32 s{sT0}, s{sW}, 12
    s_add_u32 s{sT0}, s{sT0}, {RES_OFF}
    v_add_u32 v{vR0}, s{sT0}, v{vA}
    s_lshl_b32 s{sT0}, s{sW}, 14
    s_add_u32 s{sT0}, s{sT0}, {65536-RES_OFF}
    v_add_u32 v{vR1}, s{sT0}, v{vR0}
    v_bfe_u32 v12, v11, 2, 2
    v_and_b32 v13, 1, v11
    v_lshl_add_u32 v14, v12, 1, v13
    s_lshl_b32 s{sT0}, s{sW}, 11
    v_add_u32 v{vW}, s{sT0}, v{vA}
    s_lshl_b32 s{sT0}, s{sW}, 8
    s_add_u32 s{sT0}, s{sT0}, 8192
    v_lshlrev_b32 v12, 2, v11
    v_add_u32 v{vQ}, s{sT0}, v12
    v_and_b32 v12, 31, v11
    v_lshlrev_b32 v12, 6, v12
    v_lshrrev_b32 v13, 5, v11
    v_lshl_add_u32 v{vF0}, v13, 24, v12
    v_bfe_u32 v12, v11, 3, 1
    v_lshrrev_b32 v13, 4, v11
    v_lshl_add_u32 v12, v12, 4, v13
    v_mul_u32_u24 v12, 9216, v12
    v_and_b32 v13, 7, v11
    v_lshl_add_u32 v{vRl}, v13, 4, v12
    v_bfe_u32 v12, v11, 1, 2
    v_lshlrev_b32 v12, 5, v12
    v_and_b32 v13, 1, v11
    v_lshl_add_u32 v12, v13, 3, v12
    v_bfe_u32 v13, v11, 5, 1
    v_lshl_add_u32 v12, v13, 4, v12
    v_bfe_u32 v13, v11, 4, 1
    v_lshl_add_u32 v12, v13, 2, v12
    v_mov_b32 v13, 0x7ff00000
    v_bfe_u32 v16, v11, 3, 1
    v_cmp_eq_u32 vcc, 0, v16
    s_nop 1
    v_cndmask_b32 v{vRs}, v13, v12, vcc
    s_mul_i32 s{sHC}, s{sH}, 9216
    s_sub_u32 s{sHC}, s{sHC}, 8192
    s_mul_i32 s{sT0}, s{sW}, 40
    s_add_u32 s{sRED}, s{sT0}, s{sH}
    s_cmp_lt_u32 s{sW}, 2
    s_cbranch_scc1 Lr_red_done
    s_mov_b32 s{sRED}, -1
    s_cmp_lg_u32 s{sW}, 2
    s_cbranch_scc1 Lr_red_done
    s_cmp_ge_u32 s{sH}, 8
    s_cbranch_scc1 Lr_red_done
    s_add_u32 s{sRED}, s{sH}, 32
Lr_red_done:
    s_lshl_b32 s{sRM}, s{sRED}, 7
    s_cmp_eq_u32 s{sRED}, -1
    s_cselect_b32 s{sRM}, 0x40000000, s{sRM}
    s_lshl_b32 s{sSW}, s{sW}, 10
    s_add_u32 s{sSW}, s{sSW}, {SX_OFF}
    s_lshl_b32 s{sSMW}, s{sW}, 8
    s_add_u32 s{sSMW}, s{sSMW}, {SM_OFF}
    s_lshr_b32 s{sOW}, s{sW}, 1
    s_lshl_b32 s{sOW}, s{sOW}, 13
    s_and_b32 s{sT0}, s{sW}, 1
    s_lshl_b32 s{sT0}, s{sT0}, 3
    s_add_u32 s{sOW}, s{sOW}, s{sT0}
    s_lshl_b32 s{sT0}, s{sH}, 13
    s_lshl_b32 s{sT1}, s{sW}, 11
    s_add_u32 s{sT0}, s{sT0}, s{sT1}
    s_add_u32 s{sKX}, s{sT0}, {WS_KX}
    s_add_u32 s{sVX}, s{sT0}, {WS_VX}
    s_lshr_b32 s{sT0}, s{sT0}, 1
    s_add_u32 s{sKM}, s{sT0}, {WS_KM}
    s_lshr_b32 s{sT0}, s{sT0}, 1
    s_add_u32 s{sVM}, s{sT0}, {WS_VM}
    s_lshl_b32 s{sFLG}, s{sH}, 7
    s_add_u32 s{sFLG}, s{sFLG}, {WS_FLAGS+FL_KVM}
    s_mov_b32 s{sMEMR}, {WS_MEMX}
    s_mov_b32 s{sMEMW}, {WS_MEMX+MEM_SLOT}
    s_mov_b32 s{sMEMA}, {WS_MEMX+3*MEM_SLOT}
    s_mov_b32 s{sPARTW}, {WS_PART}
    s_mov_b32 s{sPARTX}, {WS_PART+PART_SLOT}
    s_mov_b32 s{sTAG}, 1
    s_mov_b32 s{sKVR}, 0
    s_mov_b32 s{sBUD}, 0x100000
    s_mov_b32 s{sSTEP}, 0
    s_mov_b32 s{sC}, {f2u(128**-0.5 * 1.4426950408889634):#x}
    """)
    a(f"""
    v_lshrrev_b32 v12, 1, v14
    v_lshrrev_b32 v13, 4, v11
    v_and_b32 v16, 1, v14
    v_lshlrev_b32 v16, 4, v16
    v_mov_b32 v17, 0x3f80
    v_lshlrev_b32 v16, v16, v17
    v_cmp_eq_u32 vcc, v12, v13
    v_mov_b32 v21, 0
    v_mov_b32 v22, 0
    v_cndmask_b32 v20, 0, v16, vcc
    v_mov_b32 v23, v20
    ds_write_b128 v{vA}, v[20:23] offset:{SEL_OFF}
    v_bfe_u32 v12, v11, 3, 1
    v_lshlrev_b32 v12, 4, v12
    v_lshlrev_b32 v16, v12, v17
    v_bfe_u32 v12, v11, 2, 1              ; a
    v_and_b32 v13, 3, v11                 ; r
    v_lshl_add_u32 v12, v12, 1, v13
    v_and_b32 v13, 2, v13
    v_lshl_add_u32 v12, v13, 2, v12
    v_cmp_eq_u32 vcc, 0, v12
    s_nop 1
    v_cndmask_b32 v24, 0, v16, vcc
    v_cmp_eq_u32 vcc, 1, v12
    s_nop 1
    v_cndmask_b32 v25, 0, v16, vcc
    v_cmp_eq_u32 vcc, 2, v12
    s_nop 1
    v_cndmask_b32 v26, 0, v16, vcc
    v_cmp_eq_u32 vcc, 3, v12
    s_nop 1
    v_cndmask_b32 v27, 0, v16, vcc
    ds_write_b128 v{vA}, v[24:27] offset:{RSEL_OFF}
    s_cmp_eq_u32 s{sW}, 3
    s_cselect_b64 s[{sFm}:{sFm+1}], 1, 0
    """)

def rec_init_exchange(a):
    a(f"""
    v_mov_b32 v12, -1
    v_mov_b32 v13, -1
    v_mov_b32 v14, -1
    v_mov_b32 v15, -1
    v_mov_b64 v[16:17], 0
    v_mov_b64 v[18:19], 0
    s_mov_b64 exec, s[{sFm}:{sFm+1}]
    buffer_store_dword v16, v{vA}, {srd(S_WS)}, s{sFLG} offen sc1
    s_mov_b64 exec, -1
    s_cmp_eq_u32 s{sRED}, -1
    s_cbranch_scc1 Lr_noarm
    """)
    for sl in (sPARTW, sPARTX):
        for m in range(4):
            a(f"s_add_u32 s{sT0}, s{sRM}, s{sl}")
            a(f"s_add_u32 s{sT0}, s{sT0}, {m*36864}")
            a(f"buffer_store_dwordx4 v[16:19], v{vRl}, {srd(S_WS)}, s{sT0} offen sc1")
    a(f"""
    s_add_u32 s{sT0}, s{sRM}, s{sMEMW}
    s_add_u32 s{sT1}, s{sT0}, {MEM_SLOT}
    s_add_u32 s{sT2}, s{sT0}, {2*MEM_SLOT}
    buffer_store_dword v12, v{vRs}, {srd(S_WS)}, s{sT0} offen sc1
    buffer_store_dword v12, v{vRs}, {srd(S_WS)}, s{sT1} offen sc1
    buffer_store_dword v12, v{vRs}, {srd(S_WS)}, s{sT2} offen sc1
Lr_noarm:
    s_cmp_lg_u32 s{sH}, 0
    s_cbranch_scc1 Lr_nomem0
    v_lshrrev_b32 v16, 4, v{vA}
    v_bfe_u32 v17, v16, 2, 2
    v_and_b32 v18, 1, v16
    v_lshl_add_u32 v17, v17, 1, v18
    v_mul_u32_u24 v17, 1152, v17
    v_bfe_u32 v18, v16, 1, 1
    v_lshl_add_u32 v17, v18, 4, v17
    v_lshrrev_b32 v18, 4, v16
    v_lshl_add_u32 v17, v18, 5, v17
    s_lshl_b32 s{sT0}, s{sW}, 8
    buffer_load_dwordx4 v[20:23], v17, {srd(S_M0)}, s{sT0} offen
    buffer_load_dwordx4 v[24:27], v17, {srd(S_M0)}, s{sT0} offen offset:128
    buffer_load_dwordx4 v[28:31], v17, {srd(S_M0)}, 0 offen offset:1024
    s_lshl_b32 s{sT0}, s{sW}, 11
    s_add_u32 s{sT0}, s{sT0}, s{sMEMR}
    s_add_u32 s{sT1}, s{sMEMR}, 8192
    s_waitcnt vmcnt(0)
    buffer_store_dwordx4 v[20:23], v{vA}, {srd(S_WS)}, s{sT0} offen sc1
    buffer_store_dwordx4 v[24:27], v{vA}, {srd(S_WS)}, s{sT0} offen offset:1024 sc1
    buffer_store_dwordx4 v[28:31], v{vA}, {srd(S_WS)}, s{sT1} offen sc1
Lr_nomem0:
    """)

def rec_prologue_wave(a, w):
    vm = Q(a,"vmcnt",63); lg = Q(a,"lgkmcnt",15)
    vD, vDo, vTq0, vTq1, vTo, vTmp = 10, 11, 60, 61, 62, 63
    a(f"""
    v_lshrrev_b32 v12, 4, v{vA}           ; lane
    v_lshrrev_b32 v13, 4, v12             ; i>>4
    v_and_b32 v14, 1, v13
    v_or_b32 v14, {w<<1}, v14             ; f
    v_lshlrev_b32 v14, 1, v14
    v_and_b32 v15, 15, v12
    v_xor_b32 v15, v15, v14
    v_lshlrev_b32 v15, 4, v15
    v_add_u32 v13, {4*w}, v13
    v_lshl_add_u32 v{vD}, v13, 13, v15
    v_lshrrev_b32 v13, 3, v12
    v_mul_u32_u24 v13, 1152, v13
    v_and_b32 v15, 7, v12
    v_xor_b32 v15, {w<<1}, v15
    v_lshl_add_u32 v{vDo}, v15, 4, v13
    v_lshrrev_b32 v13, 4, v12             ; gb
    v_bfe_u32 v14, v12, 2, 2              ; r
    v_and_b32 v15, 3, v12                 ; c
    v_lshrrev_b32 v16, 1, v13
    v_and_b32 v17, 1, v13
    v_and_b32 v18, 1, v14
    v_lshrrev_b32 v19, 1, v14
    v_lshlrev_b32 v20, 4, v16
    v_lshl_add_u32 v20, v17, 2, v20
    v_add_u32 v20, v20, v18
    v_lshl_add_u32 v20, v19, 3, v20
    v_lshl_add_u32 v21, v17, 1, v18
    v_lshl_add_u32 v21, v19, 2, v21
    v_lshlrev_b32 v20, 8, v20
    v_lshl_add_u32 v20, v15, 3, v20
    v_xor_b32 v22, {2*w}, v21
    v_lshl_add_u32 v{vTq0}, v22, 5, v20
    v_xor_b32 v22, {2*w+1}, v21
    v_lshl_add_u32 v{vTq1}, v22, 5, v20
    v_lshlrev_b32 v20, 5, v17
    v_lshl_add_u32 v20, v16, 2, v20
    v_add_u32 v20, v20, v18
    v_lshl_add_u32 v20, v19, 4, v20
    v_lshlrev_b32 v20, 7, v20
    v_lshl_add_u32 v20, v15, 3, v20
    v_lshl_add_u32 v21, v17, 1, v19
    v_xor_b32 v21, {w}, v21
    v_lshl_add_u32 v{vTo}, v21, 5, v20
    s_lshl_b32 s{sT1}, s{sH}, 8
    s_mul_i32 s{sT2}, s{sH}, 147456
    """)
    def issue(n):
        mat, idx = CHUNKS[n]; slot = n % 9
        base = RES_OFF + slot*16384
        if mat in "qkv":
            S = {"q":S_WQ,"k":S_WK,"v":S_WV}[mat]
            for q in range(4):
                a(f"s_mov_b32 m0, {base + (4*q+w)*1024}")
                a(f"s_add_u32 s{sT0}, s{sT1}, {idx*64*8192 + q*16*8192}")
                a(f"buffer_load_dwordx4 v{vD}, {srd(S)}, s{sT0} offen lds")
                vm.add(n)
        else:
            for ins in (2*w, 2*w+1, 8+2*w, 9+2*w):
                a(f"s_mov_b32 m0, {base + ins*1024}")
                a(f"s_add_u32 s{sT0}, s{sT2}, {ins*8*1152 + idx*128}")
                a(f"buffer_load_dwordx4 v{vDo}, {srd(S_WO)}, s{sT0} offen lds")
                vm.add(n)
    def dest(n, f):
        mat, idx = CHUNKS[n]
        if n >= 27:
            b = 12 + (n&1)*16 + f*8
            return f"v[{b}:{b+7}]"
        if mat in "qk" and idx < 8: idx = idx ^ (2*w)
        return FR[(mat, idx, f)]
    def reads(n):
        mat, idx = CHUNKS[n]; slot = n % 9
        base = RES_OFF + slot*16384
        for f in range(2):
            d = dest(n,f)
            if mat in "qkv":
                a(f"v_add_u32 v{vTmp}, {base}, v{vTq0 if f==0 else vTq1}")
                for jg in range(4):
                    off = (jg&1)*512 + (jg>>1)*8192
                    a(f"ds_read_b64_tr_b16 {sub(d,2*jg,2)}, v{vTmp} offset:{off}"); lg.add(("r",n))
            else:
                a(f"v_add_u32 v{vTmp}, {base}, v{vTo}")
                for jg in range(4):
                    off = f*8192 + (jg>>1)*1024 + (jg&1)*256
                    a(f"ds_read_b64_tr_b16 {sub(d,2*jg,2)}, v{vTmp} offset:{off}"); lg.add(("r",n))
    def writeback(n):
        slot = n % 9
        a(f"v_add_u32 v{vTmp}, {slot*16384}, v{vR0}")
        for f in range(2):
            d = dest(n,f)
            for hf in range(2):
                a(f"ds_write_b128 v{vTmp}, {sub(d,4*hf,4)} offset:{(2*f+hf)*1024}"); lg.add(("w",n))
    for n in range(9): issue(n)
    for n in range(37):
        if n < 36: vm.wait(n)
        lg.drain()
        a("s_barrier")
        if n == 0 and w == 0:
            a(f"""
            s_add_u32 s{sT0}, s{sXCC}, 1
            v_mov_b32 v64, s{sT0}
            s_lshl_b32 s{sT0}, s{sH}, 2
            v_mov_b32 v65, s{sT0}
            s_mov_b64 exec, 1
            buffer_store_dword v64, v65, {srd(S_DBG)}, 0 offen offset:128 sc1
            s_mov_b64 exec, -1
            """); vm.add("sig")
        if n >= 1 and n-1+9 < 36: issue(n-1+9)
        if n >= 1 and n-1 >= 27: writeback(n-1)
        if n < 36: reads(n)
    lg.drain()
    a("s_barrier")

def rec_loop(a, mode, stamps=False, opt=None):
    opt = opt or {}
    comp_only = opt.get("comp_only", False)
    st = "" if mode=="f" else " sc1"
    P = f"Lr{mode}_"
    vm = Q(a,"vmcnt",63); lg = Q(a,"lgkmcnt",15)
    WS = srd(S_WS)
    names = opt.get("st", ["top","gotB","bar1","k8","bar2","bx","ow","bar3","wo","gotA","pub"])
    def sp(name):
        a.lines.append(f"; SP{mode}0 {name}")
        if stamps and name in names:
            i = names.index(name)
            a(f"{'s_memrealtime' if opt.get('rt') else 's_memtime'} s[{36+2*i}:{37+2*i}]")
    def delay(n):
        while n >= 64:
            k_ = min(n//64, 8); a(f"s_sleep {k_}"); n -= 64*k_
        while n >= 4:
            k_ = min(n//4, 16); a(f"s_nop {k_-1}"); n -= 4*k_
    def smf(acc, A, B): a(f"v_smfmac_f32_16x16x64_bf16 {vr(acc)}, {vr(A)}, {B}, v{vIdx}")
    def ldsr(dst, addr, off, tag, n=4):
        op = {4:"ds_read_b128",2:"ds_read_b64",1:"ds_read_b32"}[n]
        a(f"{op} {vr(dst,n)}, v{addr} offset:{off}"); lg.add(tag)
    Lf = lambda f: f"v[{L+8*f}:{L+8*f+7}]"
    L2f = lambda f: f"v[{KX+8*f}:{KX+8*f+7}]"
    z2 = lambda r: a(f"v_mov_b64 v[{r}:{r+1}], 0")
    cvt = lambda d,x,y: a(f"v_cvt_pk_bf16_f32 v{d}, v{x}, v{y}")
    add = lambda d,x,y: a(f"v_add_f32 v{d}, v{x}, v{y}")
    mf16 = lambda d,A,B: a(f"v_mfma_f32_16x16x16_bf16 {vr(d)}, {vr(A,2)}, {vr(B,2)}, 0")
    mf32 = lambda d,A,B,C=None: a(f"v_mfma_f32_16x16x32_bf16 {vr(d)}, {vr(A)}, {vr(B)}, {'0' if C is None else vr(C)}")
    QP = "quad_perm:[2,3,0,1] row_mask:0xf bank_mask:0xf"
    cnt = lambda inc: a(f"s_add_u32 s58, s58, {inc}") if stamps else None
    def rotate():
        a(f"""
        s_mov_b32 s{sMEMA}, s{sMEMR}
        s_mov_b32 s{sMEMR}, s{sMEMW}
        s_add_u32 s{sMEMW}, s{sMEMW}, {MEM_SLOT}
        s_and_b32 s{sMEMW}, s{sMEMW}, 0xffff
        s_or_b32 s{sMEMW}, s{sMEMW}, {WS_MEMX}
        s_mov_b32 s{sT3}, s{sPARTW}
        s_mov_b32 s{sPARTW}, s{sPARTX}
        s_mov_b32 s{sPARTX}, s{sT3}
        s_mov_b32 s{sT5}, s{sTAG}
        s_add_u32 s{sSTEP}, s{sSTEP}, 1
        s_bfe_u32 s{sTAG}, s{sSTEP}, 0x10001
        s_xor_b32 s{sTAG}, s{sTAG}, 1
        """)
    def prep():
        a(f"v_xor_b32 v{vT}, {1<<14}, v{vR1}")
        for p in range(4): ldsr(L+4*p, vR1, p*1024, "prep")
        for p in range(4): ldsr(KX+4*p, vT, p*1024, "prep")
        ldsr(SEL, vA, SEL_OFF, "prep")
        for r in range(0,16,2): z2(AQ0+r)
    def issueB():
        a(f"""
        buffer_load_dwordx4 {vr(A0)}, v{vW}, {WS}, s{sMEMR} offen sc1
        buffer_load_dwordx4 {vr(A1)}, v{vW}, {WS}, s{sMEMR} offen offset:1024 sc1
        buffer_load_dword v{vF1}, v{vQ}, {WS}, s{sMEMR} offen sc1
        """)
    def dump2():
        if stamps:
            a("s_waitcnt lgkmcnt(0)")
            a(f"s_sub_u32 m0, s{sSTEP}, 1")
            for i in range(len(names)): a(f"v_writelane_b32 v{244+i}, s{36+2*i}, m0")
            a(f"v_writelane_b32 v255, s58, m0")
            a("s_mov_b32 s58, 0")
    prep()
    if stamps: a("s_mov_b32 s58, 0")
    a.label(P+"pollB")
    if opt.get("kvcheck"):
        a(f"s_add_u32 s{sT0}, s{sSTEP}, 1\ns_cmp_ge_u32 s{sT0}, s{sKVR}\ns_cbranch_scc1 {P}kvwait")
        a.label(P+"kvok")
    issueB()
    a.label(P+"top")
    sp("top")
    B0,B1,B2,B3 = A0,A1,A2,A3
    def q(pos,f,A): smf((AQ0,AQ1)[f], A, Lf(f) if pos==8 else FR[("q",pos,f)])
    def k(pos,f,A): smf((AK0,AK1)[f], A, L2f(f) if pos==3 else (Lf(f) if pos in (1,5,7) else FR[("k",pos,f)]))
    AV0, AV1 = B3, B1
    def v(kap,f,A): smf((AV0,AV1)[f], A, FR[("v",kap,f)] if kap>=2 else Lf(f))
    xr = lambda j: a(f"v_xor_b32 v{vT}, {j*2048}, v{vW}")
    xq = lambda j: a(f"v_xor_b32 v{vS}, {j<<14}, v{vR1}")
    vm.clear(); lg.q=["x"]*9
    a("s_waitcnt vmcnt(2)")
    q(0,0,B0); a(f"v_max3_u32 v{vS}, v{A0}, v{A0+1}, v{A0+2}")
    a("s_waitcnt vmcnt(1)")
    q(0,1,B0); a(f"v_max3_u32 v{vS}, v{vS}, v{A0+3}, v{A1}"); a(f"v_max3_u32 v{vS}, v{vS}, v{A1+1}, v{A1+2}")
    a("s_waitcnt vmcnt(0)")
    a(f"v_max3_u32 v{vS}, v{vS}, v{A1+3}, v{vF1}")
    a(f"v_cmp_eq_u32 vcc, -1, v{vS}")
    k(0,0,B0)
    a("s_nop 0" if comp_only else f"s_cbranch_vccnz {P}retryB")
    a.label(P+"gotB")
    sp("gotB")
    k(0,1,B0); a(f"ds_write_b128 v{vW}, {vr(B0)}"); a(f"v_xor_b32 v{vS}, 2048, v{vW}")
    q(1,0,B1); a(f"ds_write_b128 v{vW}, {vr(B1)} offset:1024"); xr(2)
    q(1,1,B1); a(f"ds_write_b32 v{vQ}, v{vF1}")
    lg.drain(); a("s_barrier")
    sp("bar1")
    ldsr(B2, vS, 0, "p2")
    k(1,0,B1); ldsr(B3, vS, 1024, "p3")
    k(1,1,B1); ldsr(B0, vA, 8192, "k8")
    lg.wait("p2")
    q(2,0,B2); ldsr(B1, vT, 0, "p4")
    q(2,1,B2); ldsr(L, vR0, 0, ("L",0))
    lg.wait("p3")
    q(3,0,B3); ldsr(L+4, vR0, 1024, ("L",0))
    q(3,1,B3); ldsr(L+8, vR0, 2048, ("L",1))
    k(2,0,B2); ldsr(L+12, vR0, 3072, ("L",1))
    k(2,1,B2); ldsr(B2, vT, 1024, "p5"); xr(3)
    k(3,0,B3); a(f"buffer_load_dwordx4 {vr(KX)}, v{vA}, {WS}, s{sKX} offen sc1"); vm.add("kx")
    k(3,1,B3); ldsr(B3, vT, 0, "p6"); xq(2)
    lg.wait(("L",1))
    q(8,0,B0); a(f"buffer_load_dwordx4 {vr(KX+4)}, v{vA}, {WS}, s{sKX} offen offset:1024 sc1"); vm.add("kx")
    q(8,1,B0); ldsr(L, vS, 0, ("L",0))
    q(4,0,B1); ldsr(L+4, vS, 1024, ("L",0))
    q(4,1,B1); ldsr(L+8, vS, 2048, ("L",1))
    lg.wait("p5")
    q(5,0,B2); ldsr(L+12, vS, 3072, ("L",1)); xq(3)
    q(5,1,B2); a(f"buffer_load_dwordx4 {vr(VX)}, v{vA}, {WS}, s{sVX} offen sc1"); vm.add("vx")
    k(4,0,B1); a(f"buffer_load_dwordx4 {vr(VX+4)}, v{vA}, {WS}, s{sVX} offen offset:1024 sc1"); vm.add("vx")
    k(4,1,B1); ldsr(B1, vT, 1024, "p7")
    lg.wait("p6")
    q(6,0,B3); a(f"s_add_u32 s{sKX}, s{sKX}, 0x40000\ns_add_u32 s{sVX}, s{sVX}, 0x40000")
    q(6,1,B3)
    if not opt.get("nopf"): a(f"buffer_load_dword v{vF1}, v{vF0}, {WS}, s{sKX} offen sc1"); vm.add("pf")
    lg.wait(("L",1))
    k(5,0,B2); ldsr(L, vS, 0, ("L",0))
    lg.wait("p7")
    q(7,0,B1); ldsr(L+4, vS, 1024, ("L",0))
    q(7,1,B1); a(f"v_add_u32 v{vT}, s{sSW}, v{vA}")
    k(5,1,B2); ldsr(L+8, vS, 2048, ("L",1))
    k(6,0,B3); ldsr(L+12, vS, 3072, ("L",1))
    k(6,1,B3); a(f"v_lshrrev_b32 v{vS}, 2, v{vA}"); z2(AV0)
    a(f"v_mov_b32 v{AV0+2}, s{sSTEP}")
    k(8,0,B0); add(AQ0, AQ0, AQ0+2); add(AQ0+1, AQ0+1, AQ0+3)
    k(8,1,B0); add(AQ1, AQ1, AQ1+2); add(AQ1+1, AQ1+1, AQ1+3)
    lg.wait(("L",0))
    k(7,0,B1)
    if not opt.get("noflag"):
        a(f"s_mov_b64 exec, s[{sFm}:{sFm+1}]")
        a(f"buffer_store_dword v{AV0+2}, v{vA}, {WS}, s{sFLG} offen sc1"); vm.add("flag")
        a("s_mov_b64 exec, -1")
    cvt(AQ0+2, AQ0, AQ0+1); cvt(AQ0+3, AQ1, AQ1+1)
    lg.wait(("L",1))
    k(7,1,B1); ldsr(L, vR0, 16384, ("L",0)); z2(AV0+2)
    sp("k8")
    mf16(AQ1, AQ0+2, SEL); ldsr(L+4, vR0, 16384+1024, ("L",0)); z2(AV1)
    mf16(B2, AQ0+2, SEL+2); ldsr(L+8, vR0, 16384+2048, ("L",1)); z2(AV1+2)
    add(AK0, AK0, AK0+2); add(AK0+1, AK0+1, AK0+3)
    add(AK1, AK1, AK1+2); add(AK1+1, AK1+1, AK1+3)
    cvt(AK0+2, AK0, AK0+1); cvt(AK0+3, AK1, AK1+1)
    cvt(AQ0, AQ1, AQ1+1); cvt(AQ0+1, AQ1+2, AQ1+3)
    mf16(AK1, AK0+2, SEL); ldsr(L+12, vR0, 16384+3072, ("L",1))
    cvt(AQ0+2, B2, B2+1)
    mf16(SEL, AK0+2, SEL+2)
    cvt(AQ0+3, B2+2, B2+3)
    v(8,0,B0)
    vm.wait("kx")
    mf32(B2, KX, AQ0)
    mf32(AQ1, KX+4, AQ0)
    a(f"v_add_u32 v{KX+5}, s{sSMW}, v{vS}")
    cvt(AK0, AK1, AK1+1); cvt(AK0+1, AK1+2, AK1+3)
    cvt(AK0+2, SEL, SEL+1); cvt(AK0+3, SEL+2, SEL+3)
    v(8,1,B0); ldsr(SEL, vA, 0, "S4")
    mf32(AK1, AK0, AQ0); ldsr(B0, vA, 2*1024, "a0")
    for r in range(4): a(f"v_cndmask_b32 v{KX+r}, v{AQ1+r}, v{B2+r}, {MH0}")
    lg.wait("S4")
    v(0,0,SEL); a(f"ds_write_b128 v{vT}, {vr(KX)}"); lg.add("sw")
    a(f"v_cndmask_b32 v{KX+4}, v{AK1+1}, v{AK1}, {MH0}")
    v(0,1,SEL); a(f"ds_write_b32 v{KX+5}, v{KX+4}"); lg.add("sw")
    lg.wait("a0")
    v(2,0,B0); ldsr(B2, vA, 3*1024, "a2"); a(f"v_xor_b32 v{vT}, 1024, v{vT}")
    v(2,1,B0)
    if not opt.get("nokv"): a(f"buffer_store_dwordx4 {vr(AK0)}, v{vA}, {WS}, s{sKM} offen sc1"); vm.add("km")
    lg.wait("sw")
    a("s_barrier")
    sp("bar2")
    m, m2 = KX+6, KX+7
    D = AQ1
    ldsr(AQ0, vT, 0, ("sx",0)); a(f"v_xor_b32 v{vT}, 3072, v{vT}")
    lg.wait("a2")
    v(3,0,B2); ldsr(AQ1, vT, 0, ("sx",1)); a(f"v_xor_b32 v{vT}, 1024, v{vT}")
    v(3,1,B2); ldsr(AK0, vT, 0, ("sx",2))
    a(f"ds_read2st64_b32 {vr(AK1,2)}, v{vS} offset0:{SM_OFF//256} offset1:{SM_OFF//256+1}"); lg.add("sm")
    a(f"ds_read2st64_b32 {vr(AK1+2,2)}, v{vS} offset0:{SM_OFF//256+2} offset1:{SM_OFF//256+3}"); lg.add("sm")
    ldsr(SEL, vA, 4*1024, "S4"); ldsr(B0, vA, 5*1024, "a0"); ldsr(B2, vA, 6*1024, "a2")
    lg.wait(("sx",0))
    for r in range(4): add(KX+r, KX+r, AQ0+r)
    lg.wait(("sx",2))
    for r in range(4): add(AQ1+r, AQ1+r, AK0+r)
    lg.wait("sm")
    add(AK1, AK1, AK1+1); add(AK1+2, AK1+2, AK1+3)
    for r in range(4): add(AQ0+r, KX+r, AQ1+r)
    add(KX, AK1, AK1+2)
    a(f"v_max3_f32 v{m}, v{AQ0}, v{AQ0+1}, v{AQ0+2}")
    a(f"v_max3_f32 v{m}, v{m}, v{AQ0+3}, v{KX}")
    lg.wait("S4")
    v(4,0,SEL); ldsr(L, vR0, 2*16384, ("L",0))
    a(f"v_max_f32_dpp v{m}, v{m}, v{m} {QP}")
    a(f"v_mov_b32 v{m2}, v{m}")
    v(4,1,SEL); ldsr(L+4, vR0, 2*16384+1024, ("L",0))
    a(f"v_permlane16_swap_b32 v{m}, v{m2}")
    a(f"v_max_f32 v{m}, v{m}, v{m2}")
    a(f"v_mov_b32 v{m2}, v{m}")
    lg.wait("a0")
    v(5,0,B0); ldsr(SEL, vA, 7*1024, "S4")
    a(f"v_permlane32_swap_b32 v{m}, v{m2}")
    a(f"v_max_f32 v{m}, v{m}, v{m2}")
    v(5,1,B0); ldsr(L+8, vR0, 2*16384+2048, ("L",1))
    a(f"v_mul_f32 v{m}, s{sC}, v{m}")
    srcs = [AQ0,AQ0+1,AQ0+2,AQ0+3,KX]
    for s_ in srcs[:4]: a(f"v_fma_f32 v{s_}, v{s_}, s{sC}, -v{m}")
    lg.wait("a2")
    v(6,0,B2); ldsr(L+12, vR0, 2*16384+3072, ("L",1))
    for s_ in srcs[:2]: a(f"v_exp_f32 v{s_}, v{s_}")
    v(6,1,B2); ldsr(B0, vA, 1*1024, "a0")
    for s_ in srcs[2:4]: a(f"v_exp_f32 v{s_}, v{s_}")
    lg.wait("S4")
    v(7,0,SEL)
    c0,c1 = KX+2, KX+3
    BL, BH = AK0, AK1
    cvt(c0, AQ0, AQ0+1); cvt(c1, AQ0+2, AQ0+3)
    v(7,1,SEL)
    a(f"v_cndmask_b32 v{BL}, 0, v{c0}, {MH0}")
    a(f"v_cndmask_b32 v{BL+1}, 0, v{c1}, {MH0}")
    a(f"v_cndmask_b32 v{BH+2}, v{c0}, 0, {MH0}")
    a(f"v_cndmask_b32 v{BH+3}, v{c1}, 0, {MH0}")
    lg.wait("a0")
    v(1,0,B0)
    a(f"v_mov_b32_dpp v{BH}, v{BL} {QP}")
    v(1,1,B0)
    sp("bx")
    a(f"v_mov_b32_dpp v{BH+1}, v{BL+1} {QP}")
    a(f"v_mov_b32_dpp v{BL+2}, v{BH+2} {QP}")
    a(f"v_mov_b32_dpp v{BL+3}, v{BH+3} {QP}")
    a(f"v_fma_f32 v{KX}, v{KX}, s{sC}, -v{m}")
    vm.wait("vx")
    mf32(D, VX+4, BH)
    a(f"v_exp_f32 v{KX}, v{KX}")
    mf32(D, VX, BL, D)
    add(m, AQ0, AQ0+1); add(m2, AQ0+2, AQ0+3)
    a(f"v_cvt_pk_bf16_f32 v{KX+1}, v{KX}, 0")
    add(AV0, AV0, AV0+2); add(AV0+1, AV0+1, AV0+3)
    a(f"v_lshlrev_b32 v{KX+2}, 16, v{KX+1}")
    add(AV1, AV1, AV1+2); add(AV1+1, AV1+1, AV1+3)
    a(f"v_cndmask_b32 v{KX+4}, v{KX+2}, v{KX+1}, {MH0}")
    add(m, m, m2)
    BM = AQ0
    z2(BM+2)
    a(f"v_or_b32_dpp v{KX+4}, v{KX+4}, v{KX+4} {QP}")
    add(m, m, KX)
    cvt(KX, AV0, AV0+1); cvt(KX+1, AV1, AV1+1)
    a(f"v_cndmask_b32 v{BM}, 0, v{KX+4}, {MH0}")
    a(f"v_cndmask_b32 v{BM+1}, v{KX+4}, 0, {MH0}")
    a(f"v_add_f32_dpp v{m}, v{m}, v{m} {QP}")
    a(f"v_lshrrev_b32 v{vS}, 1, v{vA}")
    mf32(D, KX, BM, D)
    if not opt.get("nokv"): a(f"buffer_store_dwordx2 {vr(KX,2)}, v{vS}, {WS}, s{sVM} offen sc1"); vm.add("vm")
    a(f"v_mov_b32 v{m2}, v{m}")
    a(f"v_add_u32 v{vS}, s{sOW}, v{vA}")
    a(f"v_add_u32 v{vT}, {7*16384}, v{vR0}")
    a(f"v_permlane16_swap_b32 v{m}, v{m2}")
    add(m, m, m2)
    a(f"v_mov_b32 v{m2}, v{m}")
    a(f"""
    s_cmp_eq_u32 s{sSTEP}, 63
    s_cbranch_scc1 {P}done
    """)
    a(f"v_permlane32_swap_b32 v{m}, v{m2}")
    add(m, m, m2)
    a(f"v_rcp_f32 v{m}, v{m}")
    z2(SEL)
    for r in range(4): a(f"v_mul_f32 v{D+r}, v{D+r}, v{m}")
    cvt(KX+2, D, D+1); cvt(KX+3, D+2, D+3)
    a(f"ds_write_b64 v{vS}, {vr(KX+2,2)}"); lg.add("ow")
    sp("ow")
    z2(SEL+2)
    for r in range(0,16,2): z2(AQ0+r)
    for r in range(0,8,2): z2(VX+r)
    lg.wait("ow")
    a("s_barrier")
    OA = KX
    ldsr(OA, vA, 0, "o0"); ldsr(OA+4, vA, 8192, "o1")
    n0 = opt.get("n0", 2)
    def oread2(j):
        if j<4: ldsr(L+4*j, vT, j*1024, "O7")
        else: ldsr(A0+4*(j-4), vT, 16384+(j-4)*1024, "O8")
    for j in range(n0): oread2(j)
    sp("bar3")
    def wofrag(c,u):
        if c==7: return Lf(u)
        if c==8: return f"v[{A0+8*u}:{A0+8*u+7}]"
        return FR[("o",c,u)]
    accs = {0:SEL, 1:AQ0, 2:AQ1, 3:AK0, 4:AK1, 5:VX, 6:VX+4, 7:SEL, 8:AQ0}
    def pv(c):
        x = accs[c]
        return [f"v_add_f32 v{x}, v{x}, v{x+2}", f"v_add_f32 v{x+1}, v{x+1}, v{x+3}", f"v_cvt_pk_bf16_f32 v{x}, v{x}, v{x+1}\nv_bfi_b32 v{x}, 1, s{sTAG}, v{x}"]
    def ps(c):
        return f"buffer_store_dword v{accs[c]}, v{vQ}, {WS}, s{(sT0,sT1,sT2)[c>>2]} offen offset:{(c&3)*1024}{st}"
    order = [(c,u) for c in range(9) for u in range(2)]
    def oread(j):
        if j<4: ldsr(L+4*j, vT, j*1024, "O7")
        else: ldsr(A0+4*(j-4), vT, 16384+(j-4)*1024, "O8")
    Z = lambda r: f"v_mov_b64 v[{r}:{r+1}], 0"
    sal = {0:[f"s_add_u32 s{sT0}, s{sPARTW}, s{sHC}", f"s_add_u32 s{sKM}, s{sKM}, 0x20000"], 1:[f"s_add_u32 s{sT1}, s{sT0}, 4096", f"s_add_u32 s{sVM}, s{sVM}, 0x10000"],
           2:[f"s_add_u32 s{sT2}, s{sT0}, 8192", f"s_add_u32 s{sL0}, s{sRM}, s{sPARTW}"], 3:[f"s_add_u32 s{sL0+1}, s{sL0}, 36864", f"s_add_u32 s{sL0+2}, s{sL0}, {2*36864}"],
           4:[f"s_add_u32 s{sL0+3}, s{sL0}, {3*36864}", f"s_add_u32 s{sT4}, s{sRM}, s{sMEMW}"]}
    def pvl(c): return "\n".join(pv(c)).split("\n")
    vq = pvl(0)+pvl(1)+[Z(SEL),Z(SEL+2)]+pvl(2)+[Z(AQ0),Z(AQ0+2)]+pvl(3)+pvl(4)+pvl(5)+pvl(6)+pvl(7)
    per = {4:3,5:3,6:2,7:0,8:3,9:3,10:3,11:3,12:2,13:2,14:2,15:2,16:0,17:4}
    per = {4:3,5:3,6:2,7:3,8:3,9:3,10:3,11:2,12:2,13:3,14:1,15:4,16:0,17:4}
    stores = {6:[0],7:[1],9:[2],11:[3],13:[4],15:[5],16:[6]}
    sched = {}
    for i in range(18):
        n = per.get(i,0)
        sched[i] = ([ps(c) for c in stores.get(i,[])], vq[:n]); vq = vq[n:]
    assert not vq
    lg.wait("o0")
    for i,(c,u) in enumerate(order):
        if i==1: lg.wait("o1")
        if (c,u)==(7,0): lg.wait("O7")
        if (c,u)==(8,0): lg.wait("O8")
        smf(accs[c], OA+4*u, wofrag(c,u))
        for l in sal.get(i,[]): a(l)
        if i + n0 < 8 and i < 6: oread2(i + n0)
        if i == 5:
            for j in range(6 + n0, 8): oread2(j)
        mem, val = sched.get(i, ([],[]))
        for l in mem+val: a(l)
    a(ps(7))
    for l in pv(8): a(l)
    a(ps(8))
    sp("wo")
    RS, RD, R0 = VX, VX+4, A0
    a(f"""
    s_cmp_eq_u32 s{sRED}, -1
    {"s_branch" if comp_only else "s_cbranch_scc1"} {P}nored
    """)
    def loadsA():
        for mm in range(4):
            a(f"buffer_load_dwordx4 {vr(R0+4*mm)}, v{vRl}, {WS}, s{sL0+mm} offen sc1")
    lg.clear()
    ldsr(RS, vA, RSEL_OFF, "rs")
    a(f"s_cmp_lg_u32 s{sW}, 1\ns_cbranch_scc1 {P}pollA")
    delay(opt.get("dA", 256))
    a.label(P+"pollA")
    loadsA()
    rotate()
    if True:
        a(f"v_xor_b32 v{vT}, {1<<14}, v{vR1}")
        for p in range(4): ldsr(L+4*p, vR1, p*1024, "prep")
        for p in range(2): ldsr(KX+4*p, vT, p*1024, "prep")
        ldsr(SEL, vA, SEL_OFF, "prep")
        for r in range(0,16,2): z2(AQ0+r)
    a("s_waitcnt lgkmcnt(7)")
    a.label(P+"chkA")
    a(f"s_cmp_eq_u32 s{sT5}, 0\ns_cbranch_scc1 {P}chkA0")
    def chain(op):
        for mm in range(4):
            a(f"s_waitcnt vmcnt({3-mm})")
            b = R0+4*mm
            mf32(RD, RS, b, None if mm==0 else RD)
            if mm==0:
                a(f"v_bitop3_b32 v{vS}, v{b}, v{b+1}, v{b+2} bitop3:{op}"); a(f"v_bitop3_b32 v{vS}, v{vS}, v{b+3}, 1 bitop3:{op if op==0x80 else 0xfc}")
            else:
                a(f"v_bitop3_b32 v{vS}, v{vS}, v{b}, v{b+1} bitop3:{op}"); a(f"v_bitop3_b32 v{vS}, v{vS}, v{b+2}, v{b+3} bitop3:{op}")
    chain(0x80)
    a(f"v_cmp_ne_u32 vcc, 1, v{vS}")
    a(f"s_cbranch_vccnz {P}failA")
    a.label(P+"gotA")
    sp("gotA")
    a(f"""
    s_nop 3
    v_add_f32_dpp v{RD}, v{RD}, v{RD} row_ror:8 row_mask:0xf bank_mask:0xf
    v_add_f32_dpp v{RD+1}, v{RD+1}, v{RD+1} row_ror:8 row_mask:0xf bank_mask:0xf
    v_cvt_pk_bf16_f32 v{RD}, v{RD}, v{RD+1}
    buffer_store_dword v{RD}, v{vRs}, {WS}, s{sT4} offen{st}
    """)
    sp("pub")
    a(f"s_add_u32 s{sT0}, s{sRM}, s{sMEMA}")
    a(f"v_mov_b32 v{A2}, -1")
    a(f"buffer_store_dword v{A2}, v{vRs}, {WS}, s{sT0} offen{st}")
    for p in range(2,4): ldsr(KX+4*p, vT, p*1024, "prep")
    dump2()
    a(f"s_cmp_eq_u32 s{sW}, 1\ns_cbranch_scc1 {P}lateB")
    delay(opt.get("dB0", 128))
    a.label(P+"lateB")
    delay(opt.get("dB", 128) - (64 if stamps else 0))
    a(f"s_branch {P}pollB")
    a.label(P+"chkA0")
    chain(0xfe)
    a(f"v_and_b32 v{vS}, 1, v{vS}")
    a(f"v_cmp_ne_u32 vcc, 0, v{vS}")
    a(f"s_cbranch_vccz {P}gotA")
    a.label(P+"failA")
    cnt(0x10000)
    delay(opt.get("bA",0))
    loadsA()
    a(f"""
    s_sub_u32 s{sBUD}, s{sBUD}, 1
    s_cbranch_scc0 {P}chkA
    s_mov_b32 s{sBUD}, 0
    s_branch {P}gotA
    """)
    a.label(P+"retryB")
    cnt(1)
    delay(opt.get("bB",0))
    issueB()
    a(f"""
    s_sub_u32 s{sBUD}, s{sBUD}, 1
    s_cbranch_scc1 {P}giveupB
    s_nop 3
    """)
    for r in range(0,12,2): z2(AQ0+r)
    a(f"""
    s_branch {P}top
{P}giveupB:
    s_mov_b32 s{sBUD}, 0
    s_waitcnt vmcnt(0)
    s_branch {P}gotB
    """)
    if opt.get("kvcheck"):
        a.label(P+"kvwait")
        a(f"""
        v_lshlrev_b32 v{A2}, 3, v{vA}
        s_mov_b32 s{sT1}, {WS_FLAGS+FL_KV}
        s_mov_b64 exec, 0xff
        buffer_load_dword v{A3}, v{A2}, {WS}, s{sT1} offen sc1
        s_waitcnt vmcnt(0)
        v_cmp_le_u32 vcc, 32, v{A3}
        s_mov_b64 exec, -1
        s_ff0_i32_b32 s{sKVR}, vcc_lo
        s_lshl_b32 s{sKVR}, s{sKVR}, 3
        s_cmp_eq_u32 s{sKVR}, 64
        s_cselect_b32 s{sKVR}, 1000, s{sKVR}
        s_cmp_lt_u32 s{sT0}, s{sKVR}
        s_cbranch_scc1 {P}kvok
        s_sleep 4
        s_sub_u32 s{sBUD}, s{sBUD}, 1
        s_cbranch_scc0 {P}kvwait
        s_mov_b32 s{sBUD}, 0
        s_branch {P}kvok
        """)
    a.label(P+"nored")
    lg.clear()
    prep()
    rotate()
    dump2()
    delay(opt.get("dN", 512) - (64 if stamps else 0))
    a(f"s_branch {P}pollB")
    a.label(P+"done")
    if stamps:
        a(f"v_lshlrev_b32 v{vS}, 2, v{vA}")
        for i in range(len(names)): a(f"buffer_store_dword v{244+i}, v{vS}, {WS}, s{sSTO} offen offset:{4*i}")
        a(f"buffer_store_dword v255, v{vS}, {WS}, s{sSTO} offen offset:60")
    a(f"""
    s_waitcnt vmcnt(0) lgkmcnt(0)
    s_barrier
    s_mov_b64 exec, s[{sFm}:{sFm+1}]
    v_mov_b32 v{SEL}, 64
    buffer_store_dword v{SEL}, v{vA}, {WS}, s{sFLG} offen sc1
    s_mov_b64 exec, -1
    """)
    a.label(P+"exit")
    return len(names)

def rec_role(a, stamps=False, opt=None):
    rec_setup(a)
    rec_init_exchange(a)
    for w in range(1,4):
        a(f"s_cmp_eq_u32 s{sW}, {w}")
        a(f"s_cbranch_scc1 Lr_pro{w}")
    for w in range(4):
        a.label(f"Lr_pro{w}")
        rec_prologue_wave(a, w)
        if w < 3: a("s_branch Lr_prodone")
    a.label("Lr_prodone")
    a(f"""
    v_lshrrev_b32 v10, 2, v{vA}
    v_and_b32 v10, 127, v10
    s_mov_b32 s{sT1}, 0x4000000
Lr_wbar:
    buffer_load_dword v11, v10, {srd(S_DBG)}, 0 offen offset:128 sc1
    s_sub_u32 s{sT1}, s{sT1}, 1
    s_cmp_eq_u32 s{sT1}, 0
    s_cbranch_scc1 Lr_exit
    s_waitcnt vmcnt(0)
    v_cmp_eq_u32 vcc, 0, v11
    s_cbranch_vccnz Lr_wbar
    """)
    if (opt or {}).get("kvcheck"):
        a(f"""
    v_mov_b32 v10, 0
Lr_winit:
    buffer_load_dword v12, v10, {srd(S_DBG)}, 0 offen offset:{DB_INIT} sc1
    s_sub_u32 s{sT1}, s{sT1}, 1
    s_cmp_eq_u32 s{sT1}, 0
    s_cbranch_scc1 Lr_exit
    s_waitcnt vmcnt(0)
    v_cmp_eq_u32 vcc, 0, v12
    s_cbranch_vccnz Lr_winit
    """)
    a(f"""
    s_add_u32 s{sT0}, s{sXCC}, 1
    v_cmp_ne_u32 vcc, s{sT0}, v11
    s_cbranch_vccnz Lr_slow
    s_memrealtime s[96:97]
    """)
    n = rec_loop(a, "f", stamps, opt)
    a("s_branch Lr_exit")
    a.label("Lr_slow")
    rec_loop(a, "s", False, opt)
    a.label("Lr_exit")
    return n
```

```python
import sys
from common import *
from emit import *
import rec, par
from rec import *
from par import *
NAME = "recurrent_scan__memory_aug_recurrent_mem_tr__geglu_ffn__prompt"
def generate(opt=None):
    opt = opt or {}
    a = Asm()
    a("s_cmp_ge_u32 s2, 256\ns_cbranch_scc1 L_end")
    srds = [(S_WS,104,WS_SIZE),(S_WQ,16,576*8192),(S_WK,24,576*8192),(S_WV,32,576*8192),(S_WO,40,576*8192),(S_M0,8,9216),(S_DBG,96,256),
            (S_X,0,2048*1152),(S_WG,64,576*9216),(S_WU,72,576*9216),(S_WD,80,4608*1152),(S_OUT,88,2048*1152)]
    for b,k,sz in srds: a(f"s_load_dwordx2 s[{b}:{b+1}], s[0:1], {k}")
    for b,k,sz in srds: a(f"s_mov_b32 s{b+2}, {sz}\ns_mov_b32 s{b+3}, 0x20000")
    a(f"""
    s_getreg_b32 s{sXCC}, hwreg(HW_REG_XCC_ID, 0, 4)
    v_lshrrev_b32 v1, 6, v0
    s_nop 0
    v_readfirstlane_b32 s{par.sW}, v1
    s_waitcnt lgkmcnt(0)
    """)
    if opt.get("timing"): a("s_memrealtime s[4:5]")
    a(f"""
    s_cmp_lg_u32 s2, 0
    s_cbranch_scc1 L_noinit
    v_lshlrev_b32 v1, 4, v0
    v_mov_b64 v[4:5], 0
    v_mov_b64 v[6:7], 0
    """)
    for i in range(FL_CNT_BYTES//4096):
        a(f"s_mov_b32 s{t0}, {WS_FLAGS+FL_CNT+i*4096}\nbuffer_store_dwordx4 v[4:7], v1, {WS}, s{t0} offen sc1")
    a(f"""
    s_waitcnt vmcnt(0)
    s_barrier
    v_mov_b32 v1, 1
    v_mov_b32 v2, 0
    s_mov_b64 exec, 1
    buffer_store_dword v1, v2, {DBG}, 0 offen offset:{DB_INIT} sc1
    s_mov_b64 exec, -1
L_noinit:
    """)
    sel = opt.get("recsel", "xcc")
    if sel == "xcc":
        a(f"s_cmp_lg_u32 s{sXCC}, 0\ns_cbranch_scc1 L_par")
    elif sel == "low":
        a(f"s_cmp_ge_u32 s2, 32\ns_cbranch_scc1 L_par")
    elif sel == "none":
        a("s_branch L_par")
    wg_atomic(a, DB_ROLE, sH, "role")
    a(f"s_cmp_lt_u32 s{sH}, 32\ns_cbranch_scc1 L_rec")
    a.label("L_par")
    wait_ge(a, DBG, f"{DB_INIT}", 1, "init", sleep=1)
    a.label("L_lnq")
    wg_atomic(a, DB_LNQ, t0, "lnq")
    a(f"s_cmp_ge_u32 s{t0}, 32\ns_cbranch_scc1 L_g1")
    sSave = 84
    a(f"s_mov_b32 s{sSave}, s{t0}")
    ln_task(a)
    a(f"s_lshr_b32 s{t0}, s{sSave}, 2\ns_lshl_b32 s{t0}, s{t0}, 7\ns_add_u32 s{t0}, s{t0}, {WS_FLAGS+FL_LN}")
    signal(a, t0, "ln")
    a("s_branch L_lnq")
    a.label("L_g1")
    sQ, sTried = 84, 85
    a(f"""
    s_add_u32 s{sQ}, s{sXCC}, 6
    s_mul_hi_u32 s{t0}, s{sQ}, {(2**32+6)//7}
    s_mul_i32 s{t0}, s{t0}, 7
    s_sub_u32 s{sQ}, s{sQ}, s{t0}          ; queue = (xcc + 6) % 7
    s_mov_b32 s{sTried}, 0
L_g1q:
    s_lshl_b32 s{86}, s{sQ}, 2
    """)
    wg_atomic(a, DB_G1Q, t2, "g1q", soff="s86")
    a(f"""
    s_cmp_lt_u32 s{t2}, 96
    s_cbranch_scc1 L_g1task
    v_and_b32 v3, 7, v0
    v_lshlrev_b32 v3, 2, v3
    buffer_load_dword v4, v3, {DBG}, 0 offen offset:{DB_G1Q} sc1
    s_waitcnt vmcnt(0)
    v_cmp_gt_u32 vcc, 96, v4
    s_and_b32 s{t3}, vcc_lo, 0x7f
    v_mov_b32 v4, s{t3}
    v_mov_b32 v3, 0
    s_cmp_lg_u32 s{par.sW}, 0
    s_cbranch_scc1 L_g1u
    ds_write_b32 v3, v4
    s_waitcnt lgkmcnt(0)
L_g1u:
    s_barrier
    ds_read_b32 v4, v3
    s_waitcnt lgkmcnt(0)
    v_readfirstlane_b32 s{t3}, v4
    s_nop 3
    s_cmp_eq_u32 s{t3}, 0
    s_cbranch_scc1 L_g1done
    s_ff1_i32_b32 s{sQ}, s{t3}
    s_branch L_g1q
L_g1task:
    s_mul_hi_u32 s{t0}, s{t2}, {(2**32+11)//12}
    s_mul_i32 s{t1}, s{t0}, 12
    s_sub_u32 s{t1}, s{t2}, s{t1}
    s_mul_i32 s{t1}, s{t1}, 7
    s_add_u32 s{t1}, s{t1}, s{sQ}
    """)
    gemm1_task(a, "a")
    a("s_branch L_g1q")
    a.label("L_g1done")
    wg_atomic(a, DB_ROLE, t0, "peek", inc=0)
    a(f"s_cmp_ge_u32 s{t0}, 32\ns_cbranch_scc1 L_p23")
    wg_atomic(a, DB_ROLE, sH, "role2")
    a(f"s_cmp_lt_u32 s{sH}, 32\ns_cbranch_scc1 L_rec")
    a.label("L_p23")
    wg_atomic(a, DB_P23, t0, "p23")
    a(f"s_cmp_ge_u32 s{t0}, 216\ns_cbranch_scc1 L_fin")
    p23_role(a)
    a("s_branch L_fin")
    a.label("L_rec")
    ro = dict(kvcheck=1); ro.update(opt.get("rec", {}))
    rec_role(a, False, ro)
    a.label("L_fin")
    if opt.get("timing"):
        a(f"""
        s_memrealtime s[6:7]
        s_waitcnt lgkmcnt(0)
        v_mov_b32 v10, s4
        v_mov_b32 v11, s6
        v_mov_b32 v12, s96
        v_mov_b32 v13, s{sXCC}
        s_lshl_b32 s{t0}, s2, 4
        s_add_u32 s{t0}, s{t0}, {WS_STAMP}
        v_mov_b32 v14, 0
        s_mov_b64 exec, 1
        buffer_store_dwordx4 v[10:13], v14, {WS}, s{t0} offen
        """)
    a("s_waitcnt vmcnt(0)")
    a.label("L_end")
    lines = check_seq(a.lines, fix=True)
    body = "\n".join(("" if l.endswith(":") else "    ")+l for l in lines if not l.startswith("; SP"))
    hdr = open("cdna_kernels/"+NAME+".s.ref").read().split("; Override launch")[0]
    return hdr + "; @launch grid=(256,1,1) block=(256,1,1) lds=163840\n" + '.amdgcn_target "amdgcn-amd-amdhsa--gfx950"\n' + kernel_text(NAME+"_kernel", body, vgpr=512, sgpr=102, accum=256)

if __name__ == "__main__":
    out = sys.argv[1]
    opt = eval(sys.argv[2]) if len(sys.argv) > 2 else {}
    src = generate(opt)
    if out == "final":
        open("cdna_kernels/"+NAME+".s","w").write(src); print("written", len(src), "bytes")
    else:
        from cdna_launch import with_harness_metadata
        import subprocess
        open(out+".s","w").write(src)
        open(out+".harness.s","w").write(with_harness_metadata(src, NAME+"_kernel", 14, launch_lists=True))
        r = subprocess.run(["clang","-x","assembler","-target","amdgcn-amd-amdhsa","-mcpu=gfx950",out+".harness.s","-o",out+".co"],capture_output=True,text=True)
        print(r.stderr[:3000] if r.returncode else f"ok {len(src)} bytes")
```

```python
from emit import *
from layout import *
from rec import Q, vr, srd, f2u, S_WS, S_WQ, S_WK, S_WV, S_WO, S_M0, S_DBG
S_X, S_WG, S_WU, S_WD, S_OUT, S_CUR = 36, 40, 44, 48, 52, 56
sW, sXCC = 60, 62
t0,t1,t2,t3,t4,t5,t6,t7 = 64,65,66,67,68,69,70,71
WS = srd(S_WS); DBG = srd(S_DBG)

def wg_atomic(a, off, dst, tag, buf=DBG, soff="0", inc=1):
    a(f"""
    s_barrier
    s_cmp_lg_u32 s{sW}, 0
    s_cbranch_scc1 Lat_{tag}
    v_mov_b32 v1, {inc}
    v_mov_b32 v2, 0
    s_mov_b64 exec, 1
    buffer_atomic_add v1, v2, {buf}, {soff} offen offset:{off} sc0
    s_waitcnt vmcnt(0)
    ds_write_b32 v2, v1
    s_mov_b64 exec, -1
    s_waitcnt lgkmcnt(0)
Lat_{tag}:
    s_barrier
    v_mov_b32 v2, 0
    ds_read_b32 v1, v2
    s_waitcnt lgkmcnt(0)
    v_readfirstlane_b32 s{dst}, v1
    s_barrier
    """)

def signal(a, soff, tag):
    a(f"""
    s_waitcnt vmcnt(0)
    s_barrier
    s_cmp_lg_u32 s{sW}, 0
    s_cbranch_scc1 Lsg_{tag}
    v_mov_b32 v1, 1
    v_mov_b32 v2, 0
    s_mov_b64 exec, 1
    buffer_atomic_add v1, v2, {WS}, s{soff} offen
    s_mov_b64 exec, -1
Lsg_{tag}:
    """)

def wait_ge(a, buf, soff, val, tag, tmp=t7, sleep=4, voff=None):
    a(f"""
    s_mov_b32 s{tmp}, 0x800000
    v_mov_b32 v2, 0
Lw_{tag}:
    buffer_load_dword v1, v2, {buf}, {soff} offen sc1
    s_sub_u32 s{tmp}, s{tmp}, 1
    s_cbranch_scc1 Lwd_{tag}
    s_waitcnt vmcnt(0)
    v_cmp_gt_u32 vcc, {val}, v1
    s_cbranch_vccz Lwd_{tag}
    s_sleep {sleep}
    s_branch Lw_{tag}
Lwd_{tag}:
    s_waitcnt vmcnt(0)
    """)

def rne_bf16(a, r, tmp):
    a(f"v_cvt_pk_bf16_f32 v{r}, v{r}, v{r}")
    a(f"v_and_b32 v{r}, 0xffff0000, v{r}")

def ln_task(a):
    X0, F = 16, 40
    a(f"""
    v_and_b32 v3, 63, v0
    v_and_b32 v4, 15, v3
    v_mul_u32_u24 v4, 1152, v4
    v_lshrrev_b32 v5, 4, v3
    v_lshl_add_u32 v4, v5, 4, v4          ; t*1152 + g*16
    v_lshlrev_b32 v5, 4, v3               ; lane*16
    s_mul_i32 s{t1}, s{sW}, 5
    s_cmp_eq_u32 s{sW}, 3
    s_cselect_b32 s{t1}, 14, s{t1}
    s_mul_i32 s{t2}, s{t0}, {16*1152}
    s_lshl_b32 s{t4}, s{t1}, 6
    s_add_u32 s{t2}, s{t2}, s{t4}
    s_mul_i32 s{t3}, s{t0}, 18
    s_add_u32 s{t3}, s{t3}, s{t1}
    s_lshl_b32 s{t3}, s{t3}, 10
    s_add_u32 s{t3}, s{t3}, {WS_XN}
    s_cmp_lt_u32 s{sW}, 2
    s_cselect_b32 s{t4}, 0, 0x40000000
    s_add_u32 s{t5}, s{t4}, s{t2}
    s_add_u32 s{t6}, s{t4}, s{t3}
    s_add_u32 s{t6}, s{t6}, 4096
    """)
    for ks in range(5):
        a(f"buffer_load_dwordx4 {vr(X0+4*ks)}, v4, {srd(S_X)}, s{t5 if ks==4 else t2} offen offset:{ks*64}")
    a(f"""
    v_lshlrev_b32 v12, 2, v0               ; tid*4
    v_and_b32 v13, 15, v0
    v_lshlrev_b32 v13, 2, v13              ; token*4
    v_mov_b32 v6, 0
    v_mov_b32 v7, 0
    """)
    for ks in range(5):
        a(f"s_waitcnt vmcnt({4-ks})")
        for j in range(4):
            s_ = X0+4*ks+j; d = F+8*ks+2*j
            a(f"v_lshlrev_b32 v{d}, 16, v{s_}")
            a(f"v_and_b32 v{d+1}, 0xffff0000, v{s_}")
            a(f"v_add_f32 v6, v6, v{d}")
            a(f"v_add_f32 v7, v7, v{d+1}")
    def xsum(r, off):
        a(f"ds_write_b32 v12, v{r} offset:{off}\ns_waitcnt lgkmcnt(0)\ns_barrier")
        for i in range(8): a(f"ds_read2_b32 v[{84+2*i}:{85+2*i}], v13 offset0:{off//4+32*i} offset1:{off//4+32*i+16}" if off//4+32*i+16 < 256 else
                            f"ds_read2st64_b32 v[{84+2*i}:{85+2*i}], v13 offset0:0 offset1:0")
    def xsum(r, off):
        a(f"ds_write_b32 v12, v{r} offset:{off}\ns_waitcnt lgkmcnt(0)\ns_barrier")
        for i in range(16): a(f"ds_read_b32 v{84+i}, v13 offset:{off+64*i}")
        a("s_waitcnt lgkmcnt(0)")
        for st in (8,4,2,1):
            for i in range(st): a(f"v_add_f32 v{84+i}, v{84+i}, v{84+st+i}")
        a(f"v_mul_f32 v{r}, {f2u(1.0/576):#x}, v84")
    a("v_add_f32 v6, v6, v7")
    xsum(6, 256)
    a("v_mov_b32 v7, 0\nv_mov_b32 v8, 0")
    for i in range(0,40,2):
        if i == 32: a(f"s_cmp_lt_u32 s{sW}, 2\ns_cbranch_scc0 Lln_v4")
        a(f"v_sub_f32 v10, v{F+i}, v6")
        a(f"v_sub_f32 v11, v{F+i+1}, v6")
        a(f"v_fmac_f32 v7, v10, v10")
        a(f"v_fmac_f32 v8, v11, v11")
    a.label("Lln_v4")
    a("v_add_f32 v7, v7, v8")
    xsum(7, 1280)
    rne_bf16(a, 6, 9); rne_bf16(a, 7, 9)
    a(f"v_add_f32 v7, {f2u(1e-5):#x}, v7")
    rne_bf16(a, 7, 9)
    a("v_sqrt_f32 v7, v7\ns_nop 0")
    rne_bf16(a, 7, 9)
    a("v_rcp_f32 v8, v7\ns_nop 0")
    for ks in range(5):
        for j in range(4):
            d = F+8*ks+2*j; o = X0+4*ks+j
            a(f"v_sub_f32 v{d}, v{d}, v6")
            a(f"v_sub_f32 v{d+1}, v{d+1}, v6")
            a(f"v_cvt_pk_bf16_f32 v10, v{d}, v{d+1}")
            a(f"v_lshlrev_b32 v{d}, 16, v10")
            a(f"v_and_b32 v{d+1}, 0xffff0000, v10")
            a(f"v_mul_f32 v{d}, v{d}, v8")
            a(f"v_mul_f32 v{d+1}, v{d+1}, v8")
            a(f"v_cvt_pk_bf16_f32 v{o}, v{d}, v{d+1}")
        if ks < 4: a(f"buffer_store_dwordx4 {vr(X0+4*ks)}, v5, {WS}, s{t3} offen offset:{ks*1024} sc1")
        else: a(f"buffer_store_dwordx4 {vr(X0+4*ks)}, v5, {WS}, s{t6} offen sc1")

NSLOT = 5
G1T = {'on':False}
def tacc(a, i):
    if G1T['on']:
        a(f's_memrealtime s[98:99]\ns_waitcnt lgkmcnt(0)\ns_sub_u32 s100, s98, s101\ns_mov_b32 s101, s98\ns_add_u32 s{88+i}, s{88+i}, s100')
sQ, sLNOK = 84, 85
def steal(a, off, limit, tag, dst):
    a(f"""
    s_cmp_lg_u32 s{sW}, 0
    s_cbranch_scc1 Lst_{tag}
    v_and_b32 v1, 7, v0
    v_lshlrev_b32 v1, 2, v1
    buffer_load_dword v2, v1, {DBG}, 0 offen offset:{off} sc1
    s_waitcnt vmcnt(0)
    v_cmp_gt_u32 vcc, {limit}, v2
    s_and_b32 s{dst}, vcc_lo, 0x7f
    v_mov_b32 v2, s{dst}
    v_mov_b32 v1, 0
    ds_write_b32 v1, v2
    s_waitcnt lgkmcnt(0)
Lst_{tag}:
    s_barrier
    v_mov_b32 v1, 0
    ds_read_b32 v2, v1
    s_waitcnt lgkmcnt(0)
    v_readfirstlane_b32 s{dst}, v2
    s_barrier
    """)

def gemm1_role(a, opt):
    sRB, sKIND, sActO, sWO, sStr, sOutO, sM0a, sM0w, sTmp, sCnt = 72,74,75,76,77,78,79,80,81,82
    sKINDc, sOutc, sCntc, sCntp, sNext = 73, 83, 86, 87, 96
    s4r, s16r, s32r = t4, t5, t6
    vL16, vDW, vRa, vRw0, vRw1, vTa, vTk = 3,4,5,6,7,8,9
    vX = 16
    FA = [128, 192]
    def dma_w(ks):
        base = (ks % NSLOT)*32768
        g = []
        for n,lo in enumerate((0,1024,4096,5120)):
            off = {0:f"s_mov_b32 s{sTmp}, s{sWO}", 1:f"s_add_u32 s{sTmp}, s{sWO}, s{s4r}", 2:f"s_add_u32 s{sTmp}, s{sWO}, s{s16r}", 3:f"s_add_u32 s{sTmp}, s{sTmp}, s{s4r}"}[n]
            l = [f"s_add_u32 m0, s{sM0w}, {base+lo}", off, f"buffer_load_dwordx4 v{vDW}, {srd(S_CUR)}, s{sTmp} offen lds"]
            if n==3: l.append(f"s_add_u32 s{sWO}, s{sWO}, s{s32r}")
            g.append(l)
        return g
    def dma_a(ks):
        base = (ks % NSLOT)*32768
        return [[f"s_add_u32 m0, s{sM0a}, {base + i*1024}", f"s_add_u32 s{sTmp}, s{sActO}, {i*18*1024 + ks*1024}",
                 f"buffer_load_dwordx4 v{vL16}, {WS}, s{sTmp} offen sc1 lds"] for i in range(4)]
    def decode_and_start(tag):
        a(f"""
        s_sub_u32 s{t1}, 31, s{t2}
        s_cmp_lt_u32 s{t2}, 32
        s_cselect_b32 s{t2}, s{t1}, s{t2}
        s_mul_hi_u32 s{sRB}, s{t2}, {(2**32+11)//12}
        s_mul_i32 s{t1}, s{sRB}, 12
        s_sub_u32 s{t1}, s{t2}, s{t1}
        s_mul_i32 s{t1}, s{t1}, 7
        s_add_u32 s{t1}, s{t1}, s{sQ}
        s_lshr_b32 s{t2}, s{sW}, 1
        s_and_b32 s{t3}, s{sW}, 1
        s_cmp_ge_u32 s{t1}, 48
        s_cbranch_scc1 Lg1_gu_{tag}
        s_mov_b32 s{sStr}, 8192
        s_cmp_ge_u32 s{t1}, 32
        s_cbranch_scc1 Lg1_q_{tag}
        s_and_b32 s{sKIND}, s{t1}, 1
        s_lshr_b32 s{t4}, s{t1}, 1
        s_cmp_eq_u32 s{sKIND}, 0
        s_cselect_b32 s{S_CUR}, s{S_WK}, s{S_WV}
        s_cselect_b32 s{S_CUR+1}, s{S_WK+1}, s{S_WV+1}
        s_add_u32 s{sOutO}, s{sKIND}, 1
        s_lshl_b32 s{sOutO}, s{sOutO}, 24
        s_mov_b32 s{sCnt}, {WS_FLAGS+FL_KV}
        s_branch Lg1_kvq_{tag}
Lg1_q_{tag}:
        s_mov_b32 s{sKIND}, 2
        s_sub_u32 s{t4}, s{t1}, 32
        s_mov_b32 s{S_CUR}, s{S_WQ}
        s_mov_b32 s{S_CUR+1}, s{S_WQ+1}
        s_mov_b32 s{sOutO}, {WS_QX}
        s_mov_b32 s{sCnt}, {WS_FLAGS+FL_Q}
Lg1_kvq_{tag}:
        s_mov_b32 s{S_CUR+2}, {576*8192}
        s_lshl_b32 s{sWO}, s{t4}, 9
        s_lshl_b32 s{t5}, s{t2}, 8
        s_add_u32 s{sWO}, s{sWO}, s{t5}
        s_lshl_b32 s{t5}, s{t4}, 1
        s_add_u32 s{t5}, s{t5}, s{t3}
        s_lshl_b32 s{t5}, s{t5}, 13
        s_add_u32 s{sOutO}, s{sOutO}, s{t5}
        s_lshl_b32 s{t5}, s{sRB}, 1
        s_add_u32 s{t5}, s{t5}, s{t2}
        s_lshl_b32 s{t5}, s{t5}, 20
        s_add_u32 s{sOutO}, s{sOutO}, s{t5}
        s_lshl_b32 s{t5}, s{t3}, 13
        s_add_u32 s{t6}, s{t5}, 128
        s_branch Lg1_dec_{tag}
Lg1_gu_{tag}:
        s_mov_b32 s{sKIND}, 3
        s_mov_b32 s{sStr}, 9216
        s_sub_u32 s{t4}, s{t1}, 48
        s_cmp_eq_u32 s{t2}, 0
        s_cselect_b32 s{S_CUR}, s{S_WG}, s{S_WU}
        s_cselect_b32 s{S_CUR+1}, s{S_WG+1}, s{S_WU+1}
        s_mov_b32 s{S_CUR+2}, {576*9216}
        s_lshl_b32 s{sWO}, s{t4}, 8
        s_mov_b32 s{sCnt}, {WS_FLAGS+FL_H}
        s_lshl_b32 s{t5}, s{sRB}, 1
        s_add_u32 s{t5}, s{t5}, s{t2}
        s_mul_i32 s{sOutO}, s{t5}, {4*2*144*1024}
        s_lshl_b32 s{t5}, s{t4}, 1
        s_add_u32 s{t5}, s{t5}, s{t3}
        s_lshl_b32 s{t5}, s{t5}, 11
        s_add_u32 s{sOutO}, s{sOutO}, s{t5}
        s_add_u32 s{sOutO}, s{sOutO}, {WS_H}
        s_lshl_b32 s{t5}, s{t3}, 7
        s_add_u32 s{t6}, s{t5}, 8192
Lg1_dec_{tag}:
        s_mov_b32 s{S_CUR+3}, 0x20000
        s_lshl_b32 s{sTmp}, s{sRB}, 7
        s_add_u32 s{sCnt}, s{sCnt}, s{sTmp}
        v_and_b32 v11, 63, v0
        v_lshrrev_b32 v12, 4, v11
        s_lshl_b32 s{sTmp}, s{t3}, 2
        v_or_b32 v13, s{sTmp}, v12
        v_lshlrev_b32 v13, 1, v13
        v_and_b32 v14, 15, v11
        v_xor_b32 v13, v13, v14
        s_lshl_b32 s{sTmp}, s{t3}, 3
        v_add_u32 v12, s{sTmp}, v12
        v_mul_lo_u32 v12, v12, s{sStr}
        v_lshl_add_u32 v{vDW}, v13, 4, v12
        v_xor_b32 v{vRw0}, s{t5}, v10
        v_xor_b32 v{vRw1}, s{t6}, v10
        s_lshl_b32 s{sActO}, s{sRB}, 4
        s_lshl_b32 s{sTmp}, s{sW}, 2
        s_add_u32 s{sActO}, s{sActO}, s{sTmp}
        s_mul_i32 s{sActO}, s{sActO}, {18*1024}
        s_add_u32 s{sActO}, s{sActO}, {WS_XN}
        s_lshl_b32 s{s4r}, s{sStr}, 2
        s_lshl_b32 s{s16r}, s{sStr}, 4
        s_lshl_b32 s{s32r}, s{sStr}, 5
        s_bitcmp1_b32 s{sLNOK}, s{sRB}
        s_cbranch_scc1 Lg1_lnok_{tag}
        """)
        for ks in range(4):
            for gl in dma_w(ks):
                for l in gl: a(l)
        a(f"s_lshl_b32 s{sTmp}, s{sRB}, 7\ns_add_u32 s{t3}, s{sTmp}, {WS_FLAGS+FL_LN}")
        wait_ge(a, WS, f"s{t3}", 16, "ln"+tag, sleep=1)
        a(f"s_bitset1_b32 s{sLNOK}, s{sRB}")
        for ks in range(4):
            for gl in dma_a(ks):
                for l in gl: a(l)
        a(f"s_waitcnt vmcnt(0)\ns_branch Lg1_started_{tag}")
        a.label(f"Lg1_lnok_{tag}")
        for ks in range(4):
            for gl in dma_w(ks)+dma_a(ks):
                for l in gl: a(l)
        a.label(f"Lg1_started_{tag}")
        for i in range(8):
            a(f"v_xor_b32 v{vX+8+i}, {(i&3)*32}, v{vRw0 if i<4 else vRw1}")
    def addr(ks):
        base = (ks % NSLOT)*32768
        return [f"v_add_u32 v{vTa}, {base}, v{vRa}"] + [f"v_add_u32 v{vX+i}, {base+16384}, v{vX+8+i}" for i in range(8)]
    def areads(ks):
        F = FA[ks&1]
        return [f"ds_read_b128 {vr(F+4*j)}, v{vTa} offset:{j*1024}" for j in range(8)]
    def wreads(ks):
        F = FA[ks&1]
        return [f"ds_read_b64_tr_b16 {vr(F+32+4*i+2*jj,2)}, v{vX+i} offset:{jj*1024}" for i in range(8) for jj in range(2)]
    acc = lambda i,j: f"a[{4*(8*i+j)}:{4*(8*i+j)+3}]"
    EXTRA = 16
    def mainloop(actA, tag):
        a(f"s_waitcnt vmcnt({24+EXTRA})")
        a("s_barrier")
        tacc(a,2)
        if G1T['on']: a("s_memtime s[6:7]\ns_waitcnt lgkmcnt(0)\ns_mov_b32 s97, s6")
        for l in addr(0)+areads(0)+wreads(0): a(l)
        for ks in range(18):
            F = FA[ks&1]
            if ks < 17:
                n = 16+EXTRA if ks < 3 else 8*(min(ks+3,17)-(ks+1))
                a(f"s_waitcnt vmcnt({n}) lgkmcnt(0)")
                a("s_barrier")
            else:
                a("s_waitcnt lgkmcnt(0)")
            rd_ = []; dm = []
            if ks < 17:
                ad = addr(ks+1); ar = areads(ks+1); wr = wreads(ks+1)
                rd_ = [[ad[0]]] + [[ar[j], ad[j+1]] for j in range(8)] + [[l] for l in wr]
            if ks+4 < 18: dm = dma_w(ks+4) + dma_a(ks+4)
            if ks == 4:
                dm = dm + [[f"s_mov_b64 exec, s[{t0}:{t0+1}]", f"buffer_atomic_add v1, v2, {WS}, s{sCntp} offen", "s_mov_b64 exec, -1"]]
            if ks == 15:
                rd_ = rd_ + [[f"s_mov_b64 exec, s[{t0}:{t0+1}]", f"ds_write_b32 v11, v{vTk}", "s_mov_b64 exec, -1"]]
            if ks == 16:
                rd_ = rd_ + [[f"ds_read_b32 v{vTk}, v11"]]
            n = 0
            for i in range(8):
                for j in range(8):
                    W_, A_ = vr(F+32+4*i), vr(F+4*j)
                    s0, s1 = (A_, W_) if actA else (W_, A_)
                    a(f"v_mfma_f32_16x16x32_bf16 {acc(i,j)}, {s0}, {s1}, {'0' if ks==0 else acc(i,j)}")
                    if n % 7 == 3 and dm:
                        for l in dm.pop(0): a(l)
                    elif rd_ and n % 2 == 0:
                        for l in rd_.pop(0): a(l)
                    n += 1
            assert not rd_ and not dm, (ks, len(rd_), len(dm))
        tacc(a,3)
        if G1T['on']: a("s_memtime s[6:7]\ns_waitcnt lgkmcnt(0)\ns_sub_u32 s6, s6, s97\ns_add_u32 s95, s95, s6")
    T = 32
    def rd(dst, i, j):
        for r in range(4): a(f"v_accvgpr_read_b32 v{dst+r}, a{4*(8*i+j)+r}")
    def epi_kq():
        n = 0
        for j in range(8):
            for wq in range(4):
                b = T + 12*(n%4); n += 1
                rd(b, 2*wq, j); rd(b+4, 2*wq+1, j)
                if wq % 2 == 0: a(f"s_add_u32 s{sTmp}, s{sOutc}, {(j>>1)*0x40000 + (wq>>1)*4096}")
                for r in range(4): a(f"v_cvt_pk_bf16_f32 v{b+8+r}, v{b+2*r}, v{b+2*r+1}")
                a(f"buffer_store_dwordx4 {vr(b+8)}, v{vL16}, {WS}, s{sTmp} offen offset:{(wq&1)*2048 + (j&1)*1024} sc1")
    def epi_v():
        n = 0
        for sg in range(4):
            for i in range(8):
                b = T + 12*(n%4); n += 1
                rd(b, i, 2*sg); rd(b+4, i, 2*sg+1)
                if i % 4 == 0: a(f"s_add_u32 s{sTmp}, s{sOutc}, {sg*0x40000 + (i>>2)*4096}")
                for r in range(4): a(f"v_cvt_pk_bf16_f32 v{b+8+r}, v{b+2*r}, v{b+2*r+1}")
                a(f"buffer_store_dwordx4 {vr(b+8)}, v{vL16}, {WS}, s{sTmp} offen offset:{(i&3)*1024} sc1")
    def epi_gu():
        k0 = -2.0*0.7978845608028654*1.4426950408889634
        a(f"v_mov_b32 v100, {f2u(k0):#x}\nv_mov_b32 v101, v100\nv_mov_b32 v98, {f2u(k0*0.044715):#x}\nv_mov_b32 v99, v98\nv_mov_b32 v96, 1.0\nv_mov_b32 v97, 1.0")
        n = 0
        for j in range(8):
            a(f"s_add_u32 s{sTmp}, s{sOutc}, {j*144*1024}")
            for p in range(2):
                b = T + 32*(n%2); n += 1
                G, U, Z_, O_ = b, b+8, b+16, b+24
                rd(G, 2*p, j); rd(G+4, 2*p+1, j); rd(U, 4+2*p, j); rd(U+4, 5+2*p, j)
                for r in range(0,8,2): a(f"v_pk_mul_f32 {vr(Z_+r,2)}, {vr(G+r,2)}, {vr(G+r,2)}")
                for r in range(0,8,2): a(f"v_pk_fma_f32 {vr(Z_+r,2)}, {vr(Z_+r,2)}, v[98:99], v[100:101]")
                for r in range(0,8,2): a(f"v_pk_mul_f32 {vr(Z_+r,2)}, {vr(Z_+r,2)}, {vr(G+r,2)}")
                for r in range(8): a(f"v_exp_f32 v{Z_+r}, v{Z_+r}")
                for r in range(0,8,2): a(f"v_pk_mul_f32 {vr(G+r,2)}, {vr(G+r,2)}, {vr(U+r,2)}")
                for r in range(0,8,2): a(f"v_pk_add_f32 {vr(Z_+r,2)}, {vr(Z_+r,2)}, v[96:97]")
                for r in range(8): a(f"v_rcp_f32 v{Z_+r}, v{Z_+r}")
                a("s_nop 0")
                for r in range(0,8,2): a(f"v_pk_mul_f32 {vr(G+r,2)}, {vr(G+r,2)}, {vr(Z_+r,2)}")
                for r in range(4): a(f"v_cvt_pk_bf16_f32 v{O_+r}, v{G+2*r}, v{G+2*r+1}")
                a(f"buffer_store_dwordx4 {vr(O_)}, v{vL16}, {WS}, s{sTmp} offen offset:{p*1024} sc1")
    a(f"""
    v_and_b32 v11, 63, v0
    v_lshlrev_b32 v{vL16}, 4, v11
    v_lshrrev_b32 v12, 4, v11             ; g
    v_bfe_u32 v13, v11, 2, 2              ; r
    v_and_b32 v14, 3, v11                 ; c
    v_lshl_add_u32 v15, v12, 3, v13
    v_lshlrev_b32 v15, 8, v15
    v_lshl_add_u32 v15, v14, 3, v15
    v_and_b32 v12, 1, v12
    v_lshl_add_u32 v13, v12, 2, v13
    v_lshl_add_u32 v10, v13, 5, v15
    s_lshr_b32 s{t0}, s{sW}, 1
    s_lshl_b32 s{sTmp}, s{t0}, 13
    v_add_u32 v{vRa}, s{sTmp}, v{vL16}
    s_lshl_b32 s{sM0a}, s{sW}, 12
    s_and_b32 s{t1}, s{sW}, 1
    s_lshl_b32 s{sM0w}, s{t1}, 11
    s_add_u32 s{sM0w}, s{sM0w}, s{sTmp}
    s_add_u32 s{sM0w}, s{sM0w}, 16384
    s_mov_b32 s{sLNOK}, 0
    """)
    a.label("Lg1_fresh")
    a(f"s_cmp_lt_u32 s{t2}, 96\ns_cbranch_scc1 Lg1_first")
    steal(a, DB_G1Q, 96, "g1", t3)
    a(f"""
    s_cmp_eq_u32 s{t3}, 0
    s_cbranch_scc1 Lg1_done
    s_ff1_i32_b32 s{sQ}, s{t3}
    s_lshl_b32 s{sTmp}, s{sQ}, 2
    """)
    wg_atomic(a, DB_G1Q, t2, "g1q", soff=f"s{sTmp}")
    a("s_branch Lg1_fresh")
    a.label("Lg1_first")
    tacc(a,0)
    decode_and_start("a")
    a(f"s_waitcnt vmcnt(0)\ns_mov_b32 s{sCntp}, 0x40000000")
    tacc(a,1)
    a.label("Lg1_task")
    a(f"""
    s_mov_b32 s{sKINDc}, s{sKIND}
    s_mov_b32 s{sOutc}, s{sOutO}
    s_mov_b32 s{sCntc}, s{sCnt}
    s_cmp_eq_u32 s{sW}, 0
    s_cselect_b64 s[{t0}:{t0+1}], 1, 0
    v_mov_b32 v1, 1
    v_mov_b32 v2, 0
    v_mov_b32 v{vTk}, 1
    v_mov_b32 v11, 0x20000
    s_lshl_b32 s{sTmp}, s{sQ}, 2
    s_mov_b64 exec, s[{t0}:{t0+1}]
    buffer_atomic_add v{vTk}, v2, {DBG}, s{sTmp} offen offset:{DB_G1Q} sc0
    s_mov_b64 exec, -1
    s_cmp_eq_u32 s{sKINDc}, 1
    s_cbranch_scc1 Lg1_vloop
    """)
    mainloop(False, "n")
    a("s_branch Lg1_next")
    a.label("Lg1_vloop")
    mainloop(True, "v")
    a.label("Lg1_next")
    a(f"""
    v_readfirstlane_b32 s{sNext}, v{vTk}
    s_barrier
    s_cmp_lt_u32 s{sNext}, 96
    s_cbranch_scc0 Lg1_epi
    s_cmp_eq_u32 s{sCntc}, {WS_FLAGS+FL_KV}
    s_cbranch_scc1 Lg1_epi
    s_mov_b32 s{t2}, s{sNext}
    """)
    decode_and_start("b")
    a.label("Lg1_epi")
    a(f"""
    s_cmp_eq_u32 s{sKINDc}, 1
    s_cbranch_scc1 Lg1_ev
    s_cmp_eq_u32 s{sKINDc}, 3
    s_cbranch_scc1 Lg1_egu
    """)
    epi_kq()
    a("s_branch Lg1_eend")
    a.label("Lg1_ev")
    epi_v()
    a("s_branch Lg1_eend")
    a.label("Lg1_egu")
    epi_gu()
    a.label("Lg1_eend")
    tacc(a,4)
    a(f"""
    s_mov_b32 s{sCntp}, s{sCntc}
    s_cmp_eq_u32 s{sCntc}, {WS_FLAGS+FL_KV}
    s_cbranch_scc1 Lg1_now
    s_cmp_lt_u32 s{sNext}, 96
    s_cbranch_scc1 Lg1_task
Lg1_now:
    """)
    signal(a, sCntp, "g1")
    tacc(a,5)
    a(f"""
    s_mov_b32 s{t2}, s{sNext}
    s_branch Lg1_fresh
    """)
    a.label("Lg1_done")

TIM = {'on':False}
def ts(a, i):
    if TIM['on']: a(f's_memrealtime s[{88+2*i}:{89+2*i}]')

def p23_role(a):
    sG, sSL, sSEG, sTmp, sSrc, sI, sHd, sQT, sPar, sT2, sC = 72,73,74,75,76,77,78,79,80,81,82
    vL16, vD, vTr, vOut, vRed = 3,4,5,6,7
    GR = 8
    ACC = 20
    BUF = 64
    a(f"""
    s_mul_hi_u32 s{sG}, s{t0}, {(2**32+17)//18}
    s_mul_i32 s{sTmp}, s{sG}, 18
    s_sub_u32 s{sSL}, s{t0}, s{sTmp}
    v_and_b32 v11, 63, v0
    v_lshlrev_b32 v{vL16}, 4, v11
    v_lshrrev_b32 v12, 2, v11
    v_mul_u32_u24 v12, 1152, v12
    v_and_b32 v13, 3, v11
    v_lshl_add_u32 v{vD}, v13, 4, v12
    v_lshrrev_b32 v12, 2, v11
    v_lshlrev_b32 v12, 6, v12
    v_lshl_add_u32 v12, v13, 3, v12
    s_mul_i32 s{sTmp}, s{sW}, 40960
    v_add_u32 v{vTr}, s{sTmp}, v12
    v_and_b32 v12, 15, v11
    s_and_b32 s{sTmp}, s{sW}, 1
    s_lshl_b32 s{sTmp}, s{sTmp}, 4
    v_add_u32 v12, s{sTmp}, v12
    v_mul_u32_u24 v12, 1152, v12
    v_lshrrev_b32 v13, 4, v11
    v_lshl_add_u32 v12, v13, 3, v12
    s_lshl_b32 s{sTmp}, s{sSL}, 6
    s_lshr_b32 s{sT2}, s{sW}, 1
    s_lshl_b32 s{sT2}, s{sT2}, 5
    s_add_u32 s{sTmp}, s{sTmp}, s{sT2}
    v_add_u32 v{vOut}, s{sTmp}, v12
    s_mov_b32 s{sPar}, 0
    """)
    wreg = lambda ks,nt: (f"a[{8*ks+4*nt}:{8*ks+4*nt+3}]" if ks < 32 else vr(224+8*(ks-32)+4*nt))
    def load_slice(S, nk):
        a(f"""
        s_barrier
        s_mul_i32 s{sSrc}, s{sW}, {32*nk*1152}
        s_lshl_b32 s{sTmp}, s{sSL}, 6
        s_add_u32 s{sSrc}, s{sSrc}, s{sTmp}
        s_mul_i32 s{sT2}, s{sW}, 40960
        """)
        vm = Q(a,"vmcnt",63)
        def issue(ks):
            for hf in range(2):
                a(f"s_add_u32 m0, s{sT2}, {(ks%16)*2048 + hf*1024}")
                a(f"s_add_u32 s{sTmp}, s{sSrc}, {(ks*32+hf*16)*1152}")
                a(f"buffer_load_dwordx4 v{vD}, {srd(S)}, s{sTmp} offen lds"); vm.add(ks)
        for ks in range(16): issue(ks)
        for ks in range(nk):
            vm.wait(ks)
            for nt in range(2):
                for jj in range(2):
                    w_ = wreg(ks,nt); k_=w_[0]; b=int(w_[2:w_.index(":")])
                    a(f"ds_read_b64_tr_b16 {k_}[{b+2*jj}:{b+2*jj+1}], v{vTr} offset:{(ks%16)*2048 + jj*1024 + nt*32}")
            if ks+16 < nk:
                a("s_waitcnt lgkmcnt(0)"); issue(ks+16)
        a("s_waitcnt lgkmcnt(0)\ns_barrier")
    def gemm(nk, NK, tag):
        a(f"""
        s_mul_i32 s{sTmp}, s{sW}, {nk*1024}
        s_add_u32 s{sSrc}, s{sSrc}, s{sTmp}
        s_add_u32 s{sT2}, s{sSrc}, {NK*1024}
        """)
        vm = Q(a,"vmcnt",63)
        def issue(ks):
            if ks and ks % 4 == 0:
                a(f"s_add_u32 s{sSrc}, s{sSrc}, 4096\ns_add_u32 s{sT2}, s{sT2}, 4096")
            for tt in range(2):
                a(f"buffer_load_dwordx4 {vr(BUF+8*(ks%16)+4*tt)}, v{vL16}, {WS}, s{(sSrc,sT2)[tt]} offen offset:{(ks%4)*1024} sc1"); vm.add(ks)
        for ks in range(16): issue(ks)
        for ks in range(nk):
            vm.wait(ks)
            for nt in range(2):
                for tt in range(2):
                    d = vr(ACC+4*(2*nt+tt))
                    a(f"v_mfma_f32_16x16x32_bf16 {d}, {wreg(ks,nt)}, {vr(BUF+8*(ks%16)+4*tt)}, {'0' if ks==0 else d}")
            if ks+16 < nk: issue(ks+16)
        a(f"""
        s_lshl_b32 s{sTmp}, s{sW}, 12
        s_add_u32 s{sTmp}, s{sTmp}, s{sPar}
        v_add_u32 v{vRed}, s{sTmp}, v{vL16}
        s_nop 4
        """)
        for q in range(4): a(f"ds_write_b128 v{vRed}, {vr(ACC+4*q)} offset:{q*1024}")
        a(f"""
        s_lshl_b32 s{sTmp}, s{sW}, 10
        s_add_u32 s{sTmp}, s{sTmp}, s{sPar}
        v_add_u32 v{vRed}, s{sTmp}, v{vL16}
        s_xor_b32 s{sPar}, s{sPar}, 16384
        s_waitcnt lgkmcnt(0)
        s_barrier
        """)
        for q in range(4): a(f"ds_read_b128 {vr(ACC+4*q)}, v{vRed} offset:{q*4096}")
        a("s_waitcnt lgkmcnt(0)")
        for r in range(4):
            a(f"v_add_f32 v{ACC+r}, v{ACC+r}, v{ACC+4+r}")
            a(f"v_add_f32 v{ACC+8+r}, v{ACC+8+r}, v{ACC+12+r}")
        for r in range(4): a(f"v_add_f32 v{ACC+r}, v{ACC+r}, v{ACC+8+r}")
        a(f"v_cvt_pk_bf16_f32 v{ACC+4}, v{ACC}, v{ACC+1}\nv_cvt_pk_bf16_f32 v{ACC+5}, v{ACC+2}, v{ACC+3}")
        for r in range(2):
            a(f"v_lshlrev_b32 v{ACC+2*r}, 16, v{ACC+4+r}\nv_and_b32 v{ACC+2*r+1}, 0xffff0000, v{ACC+4+r}")
    ts(a,0)
    load_slice(S_WD, 36)
    a(f"s_mov_b32 s{sSEG}, s{sG}\ns_mov_b32 s{sI}, 0")
    a.label("Lp2_loop")
    a(f"s_lshr_b32 s{sTmp}, s{sSEG}, 3\ns_lshl_b32 s{sTmp}, s{sTmp}, 7\ns_add_u32 s{sT2}, s{sTmp}, {WS_FLAGS+FL_H}")
    wait_ge(a, WS, f"s{sT2}", 36, "p2h")
    a(f"s_mul_i32 s{sSrc}, s{sSEG}, {2*144*1024}\ns_add_u32 s{sSrc}, s{sSrc}, {WS_H}")
    gemm(36, 144, "p2")
    for r in range(4): a(f"v_mul_f32 v{ACC+4+r}, {f2u(-1.4426950408889634):#x}, v{ACC+r}")
    for r in range(4): a(f"v_exp_f32 v{ACC+4+r}, v{ACC+4+r}")
    for r in range(4): a(f"v_add_f32 v{ACC+4+r}, 1.0, v{ACC+4+r}")
    for r in range(4): a(f"v_rcp_f32 v{ACC+4+r}, v{ACC+4+r}")
    for r in range(4): a(f"v_mul_f32 v{ACC+r}, v{ACC+r}, v{ACC+4+r}")
    a(f"v_cvt_pk_bf16_f32 v{ACC+4}, v{ACC}, v{ACC+1}\nv_cvt_pk_bf16_f32 v{ACC+5}, v{ACC+2}, v{ACC+3}")
    for r in range(0,10,2): a(f"v_mov_b64 {vr(GR+r,2)}, {vr(GR+r+2,2)}")
    a(f"v_mov_b64 {vr(GR+10,2)}, {vr(ACC+4,2)}")
    a(f"""
    s_add_u32 s{sSEG}, s{sSEG}, 12
    s_add_u32 s{sI}, s{sI}, 1
    s_cmp_lt_u32 s{sSEG}, 64
    s_cbranch_scc1 Lp2_loop
    s_cmp_eq_u32 s{sI}, 6
    s_cbranch_scc1 Lp2_done
    """)
    for r in range(0,10,2): a(f"v_mov_b64 {vr(GR+r,2)}, {vr(GR+r+2,2)}")
    a.label("Lp2_done")
    ts(a,1)
    load_slice(S_WO, 32)
    a(f"""
    v_and_b32 v36, 15, v0
    v_lshlrev_b32 v37, 7, v36
    v_cmp_gt_u32 vcc, 8, v36
    v_mov_b32 v38, 16
    v_mov_b32 v39, 32
    v_cndmask_b32 v38, v38, v39, vcc
    s_mov_b32 s{sTmp}, {WS_FLAGS+FL_KV}
    s_mov_b32 s{t7}, 0x800000
Lp3_w1:
    buffer_load_dword v39, v37, {WS}, s{sTmp} offen sc1
    s_sub_u32 s{t7}, s{t7}, 1
    s_cbranch_scc1 Lp3_w1d
    s_waitcnt vmcnt(0)
    v_cmp_gt_u32 vcc, v38, v39
    s_cbranch_vccz Lp3_w1d
    s_sleep 4
    s_branch Lp3_w1
Lp3_w1d:
    v_and_b32 v36, 31, v0
    v_lshlrev_b32 v37, 2, v36
Lp3_w2:
    buffer_load_dword v39, v37, {DBG}, 0 offen offset:{DB_TAB} sc1
    s_sub_u32 s{t7}, s{t7}, 1
    s_cbranch_scc1 Lp3_w2d
    s_waitcnt vmcnt(0)
    v_cmp_eq_u32 vcc, 0, v39
    s_cbranch_vccz Lp3_w2d
    s_sleep 4
    s_branch Lp3_w2
Lp3_w2d:
    s_waitcnt vmcnt(0)
    s_lshl_b32 s{sTmp}, s{sSL}, 2
    s_add_u32 s{sTmp}, s{sTmp}, s{sW}
    s_lshr_b32 s{sHd}, s{sTmp}, 1
    s_and_b32 s{sQT}, s{sTmp}, 1
    s_mov_b32 s{sC}, {f2u(128**-0.5 * 1.4426950408889634):#x}
    s_mov_b32 s{sSEG}, s{sG}
    """)
    ts(a,2)
    a.label("Lp3_loop")
    XR = 36
    a(f"s_mul_i32 s{sTmp}, s{sSEG}, {32*1152}")
    a(f"buffer_load_dwordx2 {vr(XR,2)}, v{vOut}, {srd(S_X)}, s{sTmp} offen")
    a(f"s_cmp_ge_u32 s{sHd}, 32\ns_cbranch_scc1 Lp3_noattn")
    QF, KF, VF, KM, VM = 64, 80, 112, 144, 160
    SX0, SX1, SM, PB, PM, OT = 40, 44, 48, 52, 56, 176
    a(f"""
    s_lshl_b32 s{sSrc}, s{sSEG}, 18
    s_lshl_b32 s{sTmp}, s{sHd}, 13
    s_add_u32 s{sSrc}, s{sSrc}, s{sTmp}
    s_lshl_b32 s{sT2}, s{sQT}, 10
    s_add_u32 s{sT2}, s{sT2}, s{sSrc}
    """)
    for hf in range(2):
        a(f"s_add_u32 s{sTmp}, s{sT2}, {WS_QX + hf*4096}")
        for i in range(2): a(f"buffer_load_dwordx4 {vr(QF+8*hf+4*i)}, v{vL16}, {WS}, s{sTmp} offen offset:{i*2048} sc1")
    for base,R in ((WS_KX,KF),(WS_VX,VF)):
        for hf in range(2):
            a(f"s_add_u32 s{sTmp}, s{sSrc}, {base + hf*4096}")
            for i in range(4): a(f"buffer_load_dwordx4 {vr(R+16*hf+4*i)}, v{vL16}, {WS}, s{sTmp} offen offset:{i*1024} sc1")
    a("s_waitcnt vmcnt(8)")
    for wq in range(4):
        for kt,S_ in ((0,SX0),(1,SX1)):
            a(f"v_mfma_f32_16x16x32_bf16 {vr(S_)}, {vr(KF+8*wq+4*kt)}, {vr(QF+4*wq)}, {'0' if wq==0 else vr(S_)}")
    a(f"""
    v_and_b32 v62, 63, v0
    v_lshrrev_b32 v38, 4, v62
    v_lshlrev_b32 v38, 2, v38
    v_and_b32 v39, 15, v62
    v_sub_u32 v38, v38, v39
    s_lshl_b32 s{sTmp}, s{sQT}, 4
    v_subrev_u32 v38, s{sTmp}, v38
    v_mov_b32 v39, 0xf149f2ca
    s_lshl_b32 s{sTmp}, s{sHd}, 7
    s_add_u32 s{sT2}, s{sTmp}, {WS_FLAGS+FL_KVM}
    s_add_u32 s{sI}, s{sSEG}, 1
    """)
    for kt,S_ in ((0,SX0),(1,SX1)):
        for r in range(4):
            a(f"v_cmp_ge_i32 vcc, {-(16*kt+r)}, v38" if 16*kt+r <= 16 else f"v_cmp_ge_i32 vcc, {(-(16*kt+r)) & 0xffffffff:#x}, v38")
            a("s_nop 1")
            a(f"v_cndmask_b32 v{S_+r}, v39, v{S_+r}, vcc")
    wait_ge(a, WS, f"s{sT2}", f"s{sI}", "p3kvm", sleep=2)
    ts(a,3)
    a(f"""
    s_lshr_b32 s{sTmp}, s{sSrc}, 1
    s_add_u32 s{sT2}, s{sTmp}, {WS_KM}
    s_lshr_b32 s{sTmp}, s{sSrc}, 2
    s_add_u32 s{sTmp}, s{sTmp}, {WS_VM}
    v_lshrrev_b32 v38, 1, v{vL16}
    """)
    for i in range(4): a(f"buffer_load_dwordx4 {vr(KM+4*i)}, v{vL16}, {WS}, s{sT2} offen offset:{i*1024} sc1")
    for i in range(4): a(f"buffer_load_dwordx2 {vr(VM+2*i,2)}, v38, {WS}, s{sTmp} offen offset:{i*512} sc1")
    a(f"v_mov_b64 {vr(VM+8,2)}, 0")
    a(f"v_max3_f32 v60, v{SX0}, v{SX0+1}, v{SX0+2}\nv_max3_f32 v60, v60, v{SX0+3}, v{SX1}\nv_max3_f32 v60, v60, v{SX1+1}, v{SX1+2}\nv_max_f32 v60, v60, v{SX1+3}")
    for wq in range(4):
        a(f"s_waitcnt vmcnt({7-wq})")
        a(f"v_mfma_f32_16x16x32_bf16 {vr(SM)}, {vr(KM+4*wq)}, {vr(QF+4*wq)}, {'0' if wq==0 else vr(SM)}")
    a(f"s_nop 7\nv_max3_f32 v60, v60, v{SM}, v{SM+1}")
    def xred(op):
        for sw in ("16","32"):
            a(f"v_mov_b32 v61, v60\ns_nop 1\nv_permlane{sw}_swap_b32 v60, v61\n{op} v60, v60, v61")
    xred("v_max_f32")
    a(f"v_mul_f32 v60, s{sC}, v60")
    vals = [SX0+r for r in range(4)] + [SX1+r for r in range(4)] + [SM, SM+1]
    for r in vals: a(f"v_fma_f32 v{r}, v{r}, s{sC}, -v60")
    for r in vals: a(f"v_exp_f32 v{r}, v{r}")
    a(f"s_nop 0\nv_add_f32 v60, v{vals[0]}, v{vals[1]}")
    for r in vals[2:]: a(f"v_add_f32 v60, v60, v{r}")
    xred("v_add_f32")
    a("v_rcp_f32 v60, v60\ns_nop 0")
    for r in vals: a(f"v_mul_f32 v{r}, v{r}, v60")
    for r in range(4): a(f"v_cvt_pk_bf16_f32 v{PB+r}, v{SX0+2*r}, v{SX0+2*r+1}")
    a(f"v_mov_b64 {vr(PM+2,2)}, 0\nv_mov_b64 {vr(SX0+2,2)}, 0\nv_mov_b32 v{PM}, 0\nv_mov_b32 v{SX0+1}, 0")
    a(f"v_cvt_pk_bf16_f32 v{PM+1}, v{SM}, v{SM+1}\nv_cvt_pk_bf16_f32 v{SX0}, v{SM}, v{SM+1}")
    a("s_waitcnt vmcnt(0)")
    for et in range(8):
        a(f"v_mfma_f32_16x16x32_bf16 {vr(OT+4*et)}, {vr(VF+4*et)}, {vr(PB)}, 0")
    for et in range(8):
        a(f"v_mfma_f32_16x16x32_bf16 {vr(OT+4*et)}, {vr(VM+2*(et>>1))}, {vr(PM if et&1 else SX0)}, {vr(OT+4*et)}")
    a(f"""
    s_lshl_b32 s{sTmp}, s{sSEG}, 1
    s_add_u32 s{sTmp}, s{sTmp}, s{sQT}
    s_lshl_b32 s{sTmp}, s{sTmp}, 17
    s_lshl_b32 s{sT2}, s{sHd}, 12
    s_add_u32 s{sTmp}, s{sTmp}, s{sT2}
    s_add_u32 s{sTmp}, s{sTmp}, {WS_O}
    """)
    for wq in range(4):
        for r in range(4): a(f"v_cvt_pk_bf16_f32 v{QF+4*wq+r}, v{OT+8*wq+2*r}, v{OT+8*wq+2*r+1}")
        a(f"buffer_store_dwordx4 {vr(QF+4*wq)}, v{vL16}, {WS}, s{sTmp} offen offset:{wq*1024} sc1")
    a.label("Lp3_noattn")
    a(f"s_lshl_b32 s{sT2}, s{sSEG}, 7\ns_add_u32 s{sT2}, s{sT2}, {WS_FLAGS+FL_O}")
    signal(a, sT2, "p3o")
    ts(a,4)
    wait_ge(a, WS, f"s{sT2}", 18, "p3o", sleep=1)
    ts(a,5)
    a(f"s_lshl_b32 s{sSrc}, s{sSEG}, 18\ns_add_u32 s{sSrc}, s{sSrc}, {WS_O}")
    gemm(32, 128, "p3")
    for r in range(2):
        a(f"v_lshlrev_b32 v{ACC+4+2*r}, 16, v{GR+r}\nv_and_b32 v{ACC+5+2*r}, 0xffff0000, v{GR+r}")
        a(f"v_lshlrev_b32 v{ACC+8+2*r}, 16, v{XR+r}\nv_and_b32 v{ACC+9+2*r}, 0xffff0000, v{XR+r}")
    for r in range(4): a(f"v_mul_f32 v{ACC+r}, v{ACC+r}, v{ACC+4+r}")
    a(f"v_cvt_pk_bf16_f32 v{ACC+4}, v{ACC}, v{ACC+1}\nv_cvt_pk_bf16_f32 v{ACC+5}, v{ACC+2}, v{ACC+3}")
    for r in range(2):
        a(f"v_lshlrev_b32 v{ACC+2*r}, 16, v{ACC+4+r}\nv_and_b32 v{ACC+2*r+1}, 0xffff0000, v{ACC+4+r}")
    for r in range(4): a(f"v_add_f32 v{ACC+r}, v{ACC+r}, v{ACC+8+r}")
    a(f"v_cvt_pk_bf16_f32 v{ACC+4}, v{ACC}, v{ACC+1}\nv_cvt_pk_bf16_f32 v{ACC+5}, v{ACC+2}, v{ACC+3}")
    a(f"s_mul_i32 s{sTmp}, s{sSEG}, {32*1152}")
    a(f"buffer_store_dwordx2 {vr(ACC+4,2)}, v{vOut}, {srd(S_OUT)}, s{sTmp} offen")
    for r in range(0,10,2): a(f"v_mov_b64 {vr(GR+r,2)}, {vr(GR+r+2,2)}")
    a(f"""
    s_add_u32 s{sSEG}, s{sSEG}, 12
    s_cmp_lt_u32 s{sSEG}, 64
    s_cbranch_scc1 Lp3_loop
    """)
```

```python
from emit import *
from layout import *
import struct as _s

class Q:
    def __init__(s, a, name, mx): s.a=a; s.name=name; s.mx=mx; s.q=[]
    def add(s, tag): s.q.append(tag)
    def wait(s, tag):
        if tag not in s.q: return
        i = max(k for k,t in enumerate(s.q) if t==tag)
        n = len(s.q)-1-i
        n = min(n, s.mx)
        s.a(f"s_waitcnt {s.name}({n})")
        s.q = s.q[len(s.q)-n:] if n>0 else []
    def drain(s):
        s.a(f"s_waitcnt {s.name}(0)"); s.q=[]
    def clear(s): s.q=[]

def vr(b, n=4): return f"v[{b}:{b+n-1}]" if n>1 else f"v{b}"
def f2u(x): return _s.unpack("<I", _s.pack("<f", x))[0]

S_WS, S_WQ, S_WK, S_WV, S_WO, S_M0, S_DBG = 8,12,16,20,24,28,32
def srd(b): return f"s[{b}:{b+3}]"
sW, sH, sXCC, sSTEP = 60,61,62,63
sMEMR, sMEMW, sMEMA, sPARTW, sPARTX = 64,65,66,67,68
sTAG = 59
sKX, sVX, sKM, sVM, sRED, sBUD, sT0, sT1, sT2, sHC = 69,70,71,72,73,74,75,76,77,78
sFLG = 79
M_H0 = 80
sSW, sSMW, sOW, sC = 84, 85, 86, 87
sT3, sRM, sT4, sT5 = 88, 83, 82, 89
sL0 = 98
sFm, sKVR = 94, 91
sSTO = 90
MH0 = f"s[{M_H0}:{M_H0+1}]"
vA,vIdx,vR0,vR1,vW,vP,vF0,vRs,vF1,vQ = 0,1,2,3,4,5,6,7,8,9
vRl = vP
vAp = vA
vS, vT = 10, 11
AQ0,AQ1,AK0,AK1 = 12,16,20,24
A0,A1,A2,A3 = 28,32,36,40
L = 44
KX, VX, SEL = 60, 68, 76
X_OFF, SEL_OFF, SM_OFF, RSEL_OFF, SX_OFF, RES_OFF = 0, 9216, 10240, 11264, 12288, 16384

def frag_regs():
    pool = [f"a[{8*i}:{8*i+7}]" for i in range(32)] + [f"v[{80+8*i}:{80+8*i+7}]" for i in range(22)]
    names = []
    for p in range(8): names += [("q",p,0),("q",p,1)]
    for p in (0,2,4,6,8): names += [("k",p,0),("k",p,1)]
    for p in range(2,9): names += [("v",p,0),("v",p,1)]
    for c in range(7): names += [("o",c,0),("o",c,1)]
    assert len(names)==54
    return dict(zip(names,pool))
FR = frag_regs()
def sub(reg, off, n):
    k=reg[0]; b=int(reg[2:reg.index(":")]); return f"{k}[{b+off}:{b+off+n-1}]"

CHUNKS = [("q",i) for i in range(8)] + [("k",i) for i in (0,2,4,6,8)] + [("v",i) for i in range(2,9)] + [("o",i) for i in range(7)] \
       + [("q",8),("v",0),("v",1),("k",1),("k",3),("k",5),("k",7),("o",7),("o",8)]
assert len(CHUNKS)==36
SLOT_Q8, SLOT_V0, SLOT_O7, SLOT_O8 = 0,1,7,8

def rec_setup(a):
    a(f"""
    v_lshrrev_b32 v10, 6, v0
    s_nop 0
    v_readfirstlane_b32 s{sW}, v10
    v_and_b32 v11, 63, v0                 ; lane
    v_lshlrev_b32 v{vA}, 4, v11
    s_mov_b32 s{M_H0}, 0x33333333
    s_mov_b32 s{M_H0+1}, 0x33333333
    v_mov_b32 v12, 0xeeee
    v_mov_b32 v13, 0x4444
    v_cndmask_b32 v{vIdx}, v12, v13, {MH0}
    s_lshl_b32 s{sT0}, s{sW}, 12
    s_add_u32 s{sT0}, s{sT0}, {RES_OFF}
    v_add_u32 v{vR0}, s{sT0}, v{vA}
    s_lshl_b32 s{sT0}, s{sW}, 14
    s_add_u32 s{sT0}, s{sT0}, {65536-RES_OFF}
    v_add_u32 v{vR1}, s{sT0}, v{vR0}
    v_bfe_u32 v12, v11, 2, 2
    v_and_b32 v13, 1, v11
    v_lshl_add_u32 v14, v12, 1, v13
    s_lshl_b32 s{sT0}, s{sW}, 11
    v_add_u32 v{vW}, s{sT0}, v{vA}
    s_lshl_b32 s{sT0}, s{sW}, 8
    s_add_u32 s{sT0}, s{sT0}, 8192
    v_lshlrev_b32 v12, 2, v11
    v_add_u32 v{vQ}, s{sT0}, v12
    v_and_b32 v12, 31, v11
    v_lshlrev_b32 v12, 6, v12
    v_lshrrev_b32 v13, 5, v11
    v_lshl_add_u32 v{vF0}, v13, 24, v12
    v_bfe_u32 v12, v11, 3, 1
    v_lshrrev_b32 v13, 4, v11
    v_lshl_add_u32 v12, v12, 4, v13
    v_mul_u32_u24 v12, 9216, v12
    v_and_b32 v13, 7, v11
    v_lshl_add_u32 v{vRl}, v13, 4, v12
    v_bfe_u32 v12, v11, 1, 2
    v_lshlrev_b32 v12, 5, v12
    v_and_b32 v13, 1, v11
    v_lshl_add_u32 v12, v13, 3, v12
    v_bfe_u32 v13, v11, 5, 1
    v_lshl_add_u32 v12, v13, 4, v12
    v_bfe_u32 v13, v11, 4, 1
    v_lshl_add_u32 v12, v13, 2, v12
    v_mov_b32 v13, 0x7ff00000
    v_bfe_u32 v16, v11, 3, 1
    v_cmp_eq_u32 vcc, 0, v16
    s_nop 1
    v_cndmask_b32 v{vRs}, v13, v12, vcc
    s_mul_i32 s{sHC}, s{sH}, 9216
    s_sub_u32 s{sHC}, s{sHC}, 8192
    s_mul_i32 s{sT0}, s{sW}, 40
    s_add_u32 s{sRED}, s{sT0}, s{sH}
    s_cmp_lt_u32 s{sW}, 2
    s_cbranch_scc1 Lr_red_done
    s_mov_b32 s{sRED}, -1
    s_cmp_lg_u32 s{sW}, 2
    s_cbranch_scc1 Lr_red_done
    s_cmp_ge_u32 s{sH}, 8
    s_cbranch_scc1 Lr_red_done
    s_add_u32 s{sRED}, s{sH}, 32
Lr_red_done:
    s_lshl_b32 s{sRM}, s{sRED}, 7
    s_cmp_eq_u32 s{sRED}, -1
    s_cselect_b32 s{sRM}, 0x40000000, s{sRM}
    s_lshl_b32 s{sSW}, s{sW}, 10
    s_add_u32 s{sSW}, s{sSW}, {SX_OFF}
    s_lshl_b32 s{sSMW}, s{sW}, 8
    s_add_u32 s{sSMW}, s{sSMW}, {SM_OFF}
    s_lshr_b32 s{sOW}, s{sW}, 1
    s_lshl_b32 s{sOW}, s{sOW}, 13
    s_and_b32 s{sT0}, s{sW}, 1
    s_lshl_b32 s{sT0}, s{sT0}, 3
    s_add_u32 s{sOW}, s{sOW}, s{sT0}
    s_lshl_b32 s{sT0}, s{sH}, 13
    s_lshl_b32 s{sT1}, s{sW}, 11
    s_add_u32 s{sT0}, s{sT0}, s{sT1}
    s_add_u32 s{sKX}, s{sT0}, {WS_KX}
    s_add_u32 s{sVX}, s{sT0}, {WS_VX}
    s_lshr_b32 s{sT0}, s{sT0}, 1
    s_add_u32 s{sKM}, s{sT0}, {WS_KM}
    s_lshr_b32 s{sT0}, s{sT0}, 1
    s_add_u32 s{sVM}, s{sT0}, {WS_VM}
    s_lshl_b32 s{sFLG}, s{sH}, 7
    s_add_u32 s{sFLG}, s{sFLG}, {WS_FLAGS+FL_KVM}
    s_mov_b32 s{sMEMR}, {WS_MEMX}
    s_mov_b32 s{sMEMW}, {WS_MEMX+MEM_SLOT}
    s_mov_b32 s{sMEMA}, {WS_MEMX+3*MEM_SLOT}
    s_mov_b32 s{sPARTW}, {WS_PART}
    s_mov_b32 s{sPARTX}, {WS_PART+PART_SLOT}
    s_mov_b32 s{sTAG}, 1
    s_mov_b32 s{sKVR}, 0
    s_mov_b32 s{sBUD}, 0x100000
    s_mov_b32 s{sSTEP}, 0
    s_mov_b32 s{sC}, {f2u(128**-0.5 * 1.4426950408889634):#x}
    """)
    a(f"""
    v_lshrrev_b32 v12, 1, v14
    v_lshrrev_b32 v13, 4, v11
    v_and_b32 v16, 1, v14
    v_lshlrev_b32 v16, 4, v16
    v_mov_b32 v17, 0x3f80
    v_lshlrev_b32 v16, v16, v17
    v_cmp_eq_u32 vcc, v12, v13
    v_mov_b32 v21, 0
    v_mov_b32 v22, 0
    v_cndmask_b32 v20, 0, v16, vcc
    v_mov_b32 v23, v20
    ds_write_b128 v{vA}, v[20:23] offset:{SEL_OFF}
    v_bfe_u32 v12, v11, 3, 1
    v_lshlrev_b32 v12, 4, v12
    v_lshlrev_b32 v16, v12, v17
    v_bfe_u32 v12, v11, 2, 1              ; a
    v_and_b32 v13, 3, v11                 ; r
    v_lshl_add_u32 v12, v12, 1, v13
    v_and_b32 v13, 2, v13
    v_lshl_add_u32 v12, v13, 2, v12
    v_cmp_eq_u32 vcc, 0, v12
    s_nop 1
    v_cndmask_b32 v24, 0, v16, vcc
    v_cmp_eq_u32 vcc, 1, v12
    s_nop 1
    v_cndmask_b32 v25, 0, v16, vcc
    v_cmp_eq_u32 vcc, 2, v12
    s_nop 1
    v_cndmask_b32 v26, 0, v16, vcc
    v_cmp_eq_u32 vcc, 3, v12
    s_nop 1
    v_cndmask_b32 v27, 0, v16, vcc
    ds_write_b128 v{vA}, v[24:27] offset:{RSEL_OFF}
    s_cmp_eq_u32 s{sW}, 3
    s_cselect_b64 s[{sFm}:{sFm+1}], 1, 0
    """)

def rec_init_exchange(a):
    a(f"""
    v_mov_b32 v12, -1
    v_mov_b32 v13, -1
    v_mov_b32 v14, -1
    v_mov_b32 v15, -1
    v_mov_b64 v[16:17], 0
    v_mov_b64 v[18:19], 0
    s_mov_b64 exec, s[{sFm}:{sFm+1}]
    buffer_store_dword v16, v{vA}, {srd(S_WS)}, s{sFLG} offen sc1
    s_mov_b64 exec, -1
    s_cmp_eq_u32 s{sRED}, -1
    s_cbranch_scc1 Lr_noarm
    """)
    for sl in (sPARTW, sPARTX):
        for m in range(4):
            a(f"s_add_u32 s{sT0}, s{sRM}, s{sl}")
            a(f"s_add_u32 s{sT0}, s{sT0}, {m*36864}")
            a(f"buffer_store_dwordx4 v[16:19], v{vRl}, {srd(S_WS)}, s{sT0} offen sc1")
    a(f"""
    s_add_u32 s{sT0}, s{sRM}, s{sMEMW}
    s_add_u32 s{sT1}, s{sT0}, {MEM_SLOT}
    s_add_u32 s{sT2}, s{sT0}, {2*MEM_SLOT}
    buffer_store_dword v12, v{vRs}, {srd(S_WS)}, s{sT0} offen sc1
    buffer_store_dword v12, v{vRs}, {srd(S_WS)}, s{sT1} offen sc1
    buffer_store_dword v12, v{vRs}, {srd(S_WS)}, s{sT2} offen sc1
Lr_noarm:
    s_cmp_lg_u32 s{sH}, 0
    s_cbranch_scc1 Lr_nomem0
    v_lshrrev_b32 v16, 4, v{vA}
    v_bfe_u32 v17, v16, 2, 2
    v_and_b32 v18, 1, v16
    v_lshl_add_u32 v17, v17, 1, v18
    v_mul_u32_u24 v17, 1152, v17
    v_bfe_u32 v18, v16, 1, 1
    v_lshl_add_u32 v17, v18, 4, v17
    v_lshrrev_b32 v18, 4, v16
    v_lshl_add_u32 v17, v18, 5, v17
    s_lshl_b32 s{sT0}, s{sW}, 8
    buffer_load_dwordx4 v[20:23], v17, {srd(S_M0)}, s{sT0} offen
    buffer_load_dwordx4 v[24:27], v17, {srd(S_M0)}, s{sT0} offen offset:128
    buffer_load_dwordx4 v[28:31], v17, {srd(S_M0)}, 0 offen offset:1024
    s_lshl_b32 s{sT0}, s{sW}, 11
    s_add_u32 s{sT0}, s{sT0}, s{sMEMR}
    s_add_u32 s{sT1}, s{sMEMR}, 8192
    s_waitcnt vmcnt(0)
    buffer_store_dwordx4 v[20:23], v{vA}, {srd(S_WS)}, s{sT0} offen sc1
    buffer_store_dwordx4 v[24:27], v{vA}, {srd(S_WS)}, s{sT0} offen offset:1024 sc1
    buffer_store_dwordx4 v[28:31], v{vA}, {srd(S_WS)}, s{sT1} offen sc1
Lr_nomem0:
    """)

def rec_prologue_wave(a, w):
    vm = Q(a,"vmcnt",63); lg = Q(a,"lgkmcnt",15)
    vD, vDo, vTq0, vTq1, vTo, vTmp = 10, 11, 60, 61, 62, 63
    a(f"""
    v_lshrrev_b32 v12, 4, v{vA}           ; lane
    v_lshrrev_b32 v13, 4, v12             ; i>>4
    v_and_b32 v14, 1, v13
    v_or_b32 v14, {w<<1}, v14             ; f
    v_lshlrev_b32 v14, 1, v14
    v_and_b32 v15, 15, v12
    v_xor_b32 v15, v15, v14
    v_lshlrev_b32 v15, 4, v15
    v_add_u32 v13, {4*w}, v13
    v_lshl_add_u32 v{vD}, v13, 13, v15
    v_lshrrev_b32 v13, 3, v12
    v_mul_u32_u24 v13, 1152, v13
    v_and_b32 v15, 7, v12
    v_xor_b32 v15, {w<<1}, v15
    v_lshl_add_u32 v{vDo}, v15, 4, v13
    v_lshrrev_b32 v13, 4, v12             ; gb
    v_bfe_u32 v14, v12, 2, 2              ; r
    v_and_b32 v15, 3, v12                 ; c
    v_lshrrev_b32 v16, 1, v13
    v_and_b32 v17, 1, v13
    v_and_b32 v18, 1, v14
    v_lshrrev_b32 v19, 1, v14
    v_lshlrev_b32 v20, 4, v16
    v_lshl_add_u32 v20, v17, 2, v20
    v_add_u32 v20, v20, v18
    v_lshl_add_u32 v20, v19, 3, v20
    v_lshl_add_u32 v21, v17, 1, v18
    v_lshl_add_u32 v21, v19, 2, v21
    v_lshlrev_b32 v20, 8, v20
    v_lshl_add_u32 v20, v15, 3, v20
    v_xor_b32 v22, {2*w}, v21
    v_lshl_add_u32 v{vTq0}, v22, 5, v20
    v_xor_b32 v22, {2*w+1}, v21
    v_lshl_add_u32 v{vTq1}, v22, 5, v20
    v_lshlrev_b32 v20, 5, v17
    v_lshl_add_u32 v20, v16, 2, v20
    v_add_u32 v20, v20, v18
    v_lshl_add_u32 v20, v19, 4, v20
    v_lshlrev_b32 v20, 7, v20
    v_lshl_add_u32 v20, v15, 3, v20
    v_lshl_add_u32 v21, v17, 1, v19
    v_xor_b32 v21, {w}, v21
    v_lshl_add_u32 v{vTo}, v21, 5, v20
    s_lshl_b32 s{sT1}, s{sH}, 8
    s_mul_i32 s{sT2}, s{sH}, 147456
    """)
    def issue(n):
        mat, idx = CHUNKS[n]; slot = n % 9
        base = RES_OFF + slot*16384
        if mat in "qkv":
            S = {"q":S_WQ,"k":S_WK,"v":S_WV}[mat]
            for q in range(4):
                a(f"s_mov_b32 m0, {base + (4*q+w)*1024}")
                a(f"s_add_u32 s{sT0}, s{sT1}, {idx*64*8192 + q*16*8192}")
                a(f"buffer_load_dwordx4 v{vD}, {srd(S)}, s{sT0} offen lds")
                vm.add(n)
        else:
            for ins in (2*w, 2*w+1, 8+2*w, 9+2*w):
                a(f"s_mov_b32 m0, {base + ins*1024}")
                a(f"s_add_u32 s{sT0}, s{sT2}, {ins*8*1152 + idx*128}")
                a(f"buffer_load_dwordx4 v{vDo}, {srd(S_WO)}, s{sT0} offen lds")
                vm.add(n)
    def dest(n, f):
        mat, idx = CHUNKS[n]
        if n >= 27:
            b = 12 + (n&1)*16 + f*8
            return f"v[{b}:{b+7}]"
        if mat in "qk" and idx < 8: idx = idx ^ (2*w)
        return FR[(mat, idx, f)]
    def reads(n):
        mat, idx = CHUNKS[n]; slot = n % 9
        base = RES_OFF + slot*16384
        for f in range(2):
            d = dest(n,f)
            if mat in "qkv":
                a(f"v_add_u32 v{vTmp}, {base}, v{vTq0 if f==0 else vTq1}")
                for jg in range(4):
                    off = (jg&1)*512 + (jg>>1)*8192
                    a(f"ds_read_b64_tr_b16 {sub(d,2*jg,2)}, v{vTmp} offset:{off}"); lg.add(("r",n))
            else:
                a(f"v_add_u32 v{vTmp}, {base}, v{vTo}")
                for jg in range(4):
                    off = f*8192 + (jg>>1)*1024 + (jg&1)*256
                    a(f"ds_read_b64_tr_b16 {sub(d,2*jg,2)}, v{vTmp} offset:{off}"); lg.add(("r",n))
    def writeback(n):
        slot = n % 9
        a(f"v_add_u32 v{vTmp}, {slot*16384}, v{vR0}")
        for f in range(2):
            d = dest(n,f)
            for hf in range(2):
                a(f"ds_write_b128 v{vTmp}, {sub(d,4*hf,4)} offset:{(2*f+hf)*1024}"); lg.add(("w",n))
    for n in range(9): issue(n)
    for n in range(37):
        if n < 36: vm.wait(n)
        lg.drain()
        a("s_barrier")
        if n == 0 and w == 0:
            a(f"""
            s_add_u32 s{sT0}, s{sXCC}, 1
            v_mov_b32 v64, s{sT0}
            s_lshl_b32 s{sT0}, s{sH}, 2
            v_mov_b32 v65, s{sT0}
            s_mov_b64 exec, 1
            buffer_store_dword v64, v65, {srd(S_DBG)}, 0 offen offset:128 sc1
            s_mov_b64 exec, -1
            """); vm.add("sig")
        if n >= 1 and n-1+9 < 36: issue(n-1+9)
        if n >= 1 and n-1 >= 27: writeback(n-1)
        if n < 36: reads(n)
    lg.drain()
    a("s_barrier")

def rec_loop(a, mode, stamps=False, opt=None):
    opt = opt or {}
    comp_only = opt.get("comp_only", False)
    st = "" if mode=="f" else " sc1"
    P = f"Lr{mode}_"
    vm = Q(a,"vmcnt",63); lg = Q(a,"lgkmcnt",15)
    WS = srd(S_WS)
    names = opt.get("st", ["top","gotB","bar1","k8","bar2","bx","ow","bar3","wo","gotA","pub"])
    def sp(name):
        a.lines.append(f"; SP{mode}0 {name}")
        if stamps and name in names:
            i = names.index(name)
            a(f"{'s_memrealtime' if opt.get('rt') else 's_memtime'} s[{36+2*i}:{37+2*i}]")
    def delay(n):
        while n >= 64:
            k_ = min(n//64, 8); a(f"s_sleep {k_}"); n -= 64*k_
        while n >= 4:
            k_ = min(n//4, 16); a(f"s_nop {k_-1}"); n -= 4*k_
    def smf(acc, A, B): a(f"v_smfmac_f32_16x16x64_bf16 {vr(acc)}, {vr(A)}, {B}, v{vIdx}")
    def ldsr(dst, addr, off, tag, n=4):
        op = {4:"ds_read_b128",2:"ds_read_b64",1:"ds_read_b32"}[n]
        a(f"{op} {vr(dst,n)}, v{addr} offset:{off}"); lg.add(tag)
    Lf = lambda f: f"v[{L+8*f}:{L+8*f+7}]"
    L2f = lambda f: f"v[{KX+8*f}:{KX+8*f+7}]"
    z2 = lambda r: a(f"v_mov_b64 v[{r}:{r+1}], 0")
    cvt = lambda d,x,y: a(f"v_cvt_pk_bf16_f32 v{d}, v{x}, v{y}")
    add = lambda d,x,y: a(f"v_add_f32 v{d}, v{x}, v{y}")
    mf16 = lambda d,A,B: a(f"v_mfma_f32_16x16x16_bf16 {vr(d)}, {vr(A,2)}, {vr(B,2)}, 0")
    mf32 = lambda d,A,B,C=None: a(f"v_mfma_f32_16x16x32_bf16 {vr(d)}, {vr(A)}, {vr(B)}, {'0' if C is None else vr(C)}")
    QP = "quad_perm:[2,3,0,1] row_mask:0xf bank_mask:0xf"
    cnt = lambda inc: a(f"s_add_u32 s58, s58, {inc}") if stamps else None
    def rotate():
        a(f"""
        s_mov_b32 s{sMEMA}, s{sMEMR}
        s_mov_b32 s{sMEMR}, s{sMEMW}
        s_add_u32 s{sMEMW}, s{sMEMW}, {MEM_SLOT}
        s_and_b32 s{sMEMW}, s{sMEMW}, 0xffff
        s_or_b32 s{sMEMW}, s{sMEMW}, {WS_MEMX}
        s_mov_b32 s{sT3}, s{sPARTW}
        s_mov_b32 s{sPARTW}, s{sPARTX}
        s_mov_b32 s{sPARTX}, s{sT3}
        s_mov_b32 s{sT5}, s{sTAG}
        s_add_u32 s{sSTEP}, s{sSTEP}, 1
        s_bfe_u32 s{sTAG}, s{sSTEP}, 0x10001
        s_xor_b32 s{sTAG}, s{sTAG}, 1
        """)
    def prep():
        a(f"v_xor_b32 v{vT}, {1<<14}, v{vR1}")
        for p in range(4): ldsr(L+4*p, vR1, p*1024, "prep")
        for p in range(4): ldsr(KX+4*p, vT, p*1024, "prep")
        ldsr(SEL, vA, SEL_OFF, "prep")
        for r in range(0,16,2): z2(AQ0+r)
    def issueB():
        a(f"""
        buffer_load_dwordx4 {vr(A0)}, v{vW}, {WS}, s{sMEMR} offen sc1
        buffer_load_dwordx4 {vr(A1)}, v{vW}, {WS}, s{sMEMR} offen offset:1024 sc1
        buffer_load_dword v{vF1}, v{vQ}, {WS}, s{sMEMR} offen sc1
        """)
    def dump2():
        if stamps:
            a("s_waitcnt lgkmcnt(0)")
            a(f"s_sub_u32 m0, s{sSTEP}, 1")
            for i in range(len(names)): a(f"v_writelane_b32 v{244+i}, s{36+2*i}, m0")
            a(f"v_writelane_b32 v255, s58, m0")
            a("s_mov_b32 s58, 0")
    prep()
    if stamps: a("s_mov_b32 s58, 0")
    a.label(P+"pollB")
    if opt.get("kvcheck"):
        a(f"s_add_u32 s{sT0}, s{sSTEP}, 1\ns_cmp_ge_u32 s{sT0}, s{sKVR}\ns_cbranch_scc1 {P}kvwait")
        a.label(P+"kvok")
    issueB()
    a.label(P+"top")
    sp("top")
    B0,B1,B2,B3 = A0,A1,A2,A3
    def q(pos,f,A): smf((AQ0,AQ1)[f], A, Lf(f) if pos==8 else FR[("q",pos,f)])
    def k(pos,f,A): smf((AK0,AK1)[f], A, L2f(f) if pos==3 else (Lf(f) if pos in (1,5,7) else FR[("k",pos,f)]))
    AV0, AV1 = B3, B1
    def v(kap,f,A): smf((AV0,AV1)[f], A, FR[("v",kap,f)] if kap>=2 else Lf(f))
    xr = lambda j: a(f"v_xor_b32 v{vT}, {j*2048}, v{vW}")
    xq = lambda j: a(f"v_xor_b32 v{vS}, {j<<14}, v{vR1}")
    vm.clear(); lg.q=["x"]*9
    a("s_waitcnt vmcnt(2)")
    q(0,0,B0); a(f"v_max3_u32 v{vS}, v{A0}, v{A0+1}, v{A0+2}")
    a("s_waitcnt vmcnt(1)")
    q(0,1,B0); a(f"v_max3_u32 v{vS}, v{vS}, v{A0+3}, v{A1}"); a(f"v_max3_u32 v{vS}, v{vS}, v{A1+1}, v{A1+2}")
    a("s_waitcnt vmcnt(0)")
    a(f"v_max3_u32 v{vS}, v{vS}, v{A1+3}, v{vF1}")
    a(f"v_cmp_eq_u32 vcc, -1, v{vS}")
    k(0,0,B0)
    a("s_nop 0" if comp_only else f"s_cbranch_vccnz {P}retryB")
    a.label(P+"gotB")
    if opt.get("steptime"):
        a(f"s_memrealtime s[92:93]\ns_memtime s[56:57]")
    sp("gotB")
    k(0,1,B0); a(f"ds_write_b128 v{vW}, {vr(B0)}"); a(f"v_xor_b32 v{vS}, 2048, v{vW}")
    q(1,0,B1); a(f"ds_write_b128 v{vW}, {vr(B1)} offset:1024"); xr(2)
    q(1,1,B1); a(f"ds_write_b32 v{vQ}, v{vF1}")
    lg.drain(); a("s_barrier")
    if opt.get("steptime"):
        a(f"s_mov_b32 m0, s{sSTEP}\nv_writelane_b32 v254, s92, m0\nv_writelane_b32 v255, s56, m0")
    sp("bar1")
    ldsr(B2, vS, 0, "p2")
    k(1,0,B1); ldsr(B3, vS, 1024, "p3")
    k(1,1,B1); ldsr(B0, vA, 8192, "k8")
    lg.wait("p2")
    q(2,0,B2); ldsr(B1, vT, 0, "p4")
    q(2,1,B2); ldsr(L, vR0, 0, ("L",0))
    lg.wait("p3")
    q(3,0,B3); ldsr(L+4, vR0, 1024, ("L",0))
    q(3,1,B3); ldsr(L+8, vR0, 2048, ("L",1))
    k(2,0,B2); ldsr(L+12, vR0, 3072, ("L",1))
    k(2,1,B2); ldsr(B2, vT, 1024, "p5"); xr(3)
    k(3,0,B3); a(f"buffer_load_dwordx4 {vr(KX)}, v{vA}, {WS}, s{sKX} offen sc1"); vm.add("kx")
    k(3,1,B3); ldsr(B3, vT, 0, "p6"); xq(2)
    lg.wait(("L",1))
    q(8,0,B0); a(f"buffer_load_dwordx4 {vr(KX+4)}, v{vA}, {WS}, s{sKX} offen offset:1024 sc1"); vm.add("kx")
    q(8,1,B0); ldsr(L, vS, 0, ("L",0))
    q(4,0,B1); ldsr(L+4, vS, 1024, ("L",0))
    q(4,1,B1); ldsr(L+8, vS, 2048, ("L",1))
    lg.wait("p5")
    q(5,0,B2); ldsr(L+12, vS, 3072, ("L",1)); xq(3)
    q(5,1,B2); a(f"buffer_load_dwordx4 {vr(VX)}, v{vA}, {WS}, s{sVX} offen sc1"); vm.add("vx")
    k(4,0,B1); a(f"buffer_load_dwordx4 {vr(VX+4)}, v{vA}, {WS}, s{sVX} offen offset:1024 sc1"); vm.add("vx")
    k(4,1,B1); ldsr(B1, vT, 1024, "p7")
    lg.wait("p6")
    q(6,0,B3); a(f"s_add_u32 s{sKX}, s{sKX}, 0x40000\ns_add_u32 s{sVX}, s{sVX}, 0x40000")
    q(6,1,B3)
    if not opt.get("nopf"): a(f"buffer_load_dword v{vF1}, v{vF0}, {WS}, s{sKX} offen sc1"); vm.add("pf")
    lg.wait(("L",1))
    k(5,0,B2); ldsr(L, vS, 0, ("L",0))
    lg.wait("p7")
    q(7,0,B1); ldsr(L+4, vS, 1024, ("L",0))
    q(7,1,B1); a(f"v_add_u32 v{vT}, s{sSW}, v{vA}")
    k(5,1,B2); ldsr(L+8, vS, 2048, ("L",1))
    k(6,0,B3); ldsr(L+12, vS, 3072, ("L",1))
    k(6,1,B3); a(f"v_lshrrev_b32 v{vS}, 2, v{vA}"); z2(AV0)
    a(f"v_mov_b32 v{AV0+2}, s{sSTEP}")
    k(8,0,B0); add(AQ0, AQ0, AQ0+2); add(AQ0+1, AQ0+1, AQ0+3)
    k(8,1,B0); add(AQ1, AQ1, AQ1+2); add(AQ1+1, AQ1+1, AQ1+3)
    lg.wait(("L",0))
    k(7,0,B1)
    if not opt.get("noflag"):
        a(f"s_mov_b64 exec, s[{sFm}:{sFm+1}]")
        a(f"buffer_store_dword v{AV0+2}, v{vA}, {WS}, s{sFLG} offen sc1"); vm.add("flag")
        a("s_mov_b64 exec, -1")
    cvt(AQ0+2, AQ0, AQ0+1); cvt(AQ0+3, AQ1, AQ1+1)
    lg.wait(("L",1))
    k(7,1,B1); ldsr(L, vR0, 16384, ("L",0)); z2(AV0+2)
    sp("k8")
    mf16(AQ1, AQ0+2, SEL); ldsr(L+4, vR0, 16384+1024, ("L",0)); z2(AV1)
    mf16(B2, AQ0+2, SEL+2); ldsr(L+8, vR0, 16384+2048, ("L",1)); z2(AV1+2)
    add(AK0, AK0, AK0+2); add(AK0+1, AK0+1, AK0+3)
    add(AK1, AK1, AK1+2); add(AK1+1, AK1+1, AK1+3)
    cvt(AK0+2, AK0, AK0+1); cvt(AK0+3, AK1, AK1+1)
    cvt(AQ0, AQ1, AQ1+1); cvt(AQ0+1, AQ1+2, AQ1+3)
    mf16(AK1, AK0+2, SEL); ldsr(L+12, vR0, 16384+3072, ("L",1))
    cvt(AQ0+2, B2, B2+1)
    mf16(SEL, AK0+2, SEL+2)
    cvt(AQ0+3, B2+2, B2+3)
    v(8,0,B0)
    vm.wait("kx")
    mf32(B2, KX, AQ0)
    mf32(AQ1, KX+4, AQ0)
    a(f"v_add_u32 v{KX+5}, s{sSMW}, v{vS}")
    cvt(AK0, AK1, AK1+1); cvt(AK0+1, AK1+2, AK1+3)
    cvt(AK0+2, SEL, SEL+1); cvt(AK0+3, SEL+2, SEL+3)
    v(8,1,B0); ldsr(SEL, vA, 0, "S4")
    mf32(AK1, AK0, AQ0); ldsr(B0, vA, 2*1024, "a0")
    for r in range(4): a(f"v_cndmask_b32 v{KX+r}, v{AQ1+r}, v{B2+r}, {MH0}")
    lg.wait("S4")
    v(0,0,SEL); a(f"ds_write_b128 v{vT}, {vr(KX)}"); lg.add("sw")
    a(f"v_cndmask_b32 v{KX+4}, v{AK1+1}, v{AK1}, {MH0}")
    v(0,1,SEL); a(f"ds_write_b32 v{KX+5}, v{KX+4}"); lg.add("sw")
    lg.wait("a0")
    v(2,0,B0); ldsr(B2, vA, 3*1024, "a2"); a(f"v_xor_b32 v{vT}, 1024, v{vT}")
    v(2,1,B0)
    if not opt.get("nokv"): a(f"buffer_store_dwordx4 {vr(AK0)}, v{vA}, {WS}, s{sKM} offen sc1"); vm.add("km")
    lg.wait("sw")
    a("s_barrier")
    sp("bar2")
    m, m2 = KX+6, KX+7
    D = AQ1
    ldsr(AQ0, vT, 0, ("sx",0)); a(f"v_xor_b32 v{vT}, 3072, v{vT}")
    lg.wait("a2")
    v(3,0,B2); ldsr(AQ1, vT, 0, ("sx",1)); a(f"v_xor_b32 v{vT}, 1024, v{vT}")
    v(3,1,B2); ldsr(AK0, vT, 0, ("sx",2))
    a(f"ds_read2st64_b32 {vr(AK1,2)}, v{vS} offset0:{SM_OFF//256} offset1:{SM_OFF//256+1}"); lg.add("sm")
    a(f"ds_read2st64_b32 {vr(AK1+2,2)}, v{vS} offset0:{SM_OFF//256+2} offset1:{SM_OFF//256+3}"); lg.add("sm")
    ldsr(SEL, vA, 4*1024, "S4"); ldsr(B0, vA, 5*1024, "a0"); ldsr(B2, vA, 6*1024, "a2")
    lg.wait(("sx",0))
    for r in range(4): add(KX+r, KX+r, AQ0+r)
    lg.wait(("sx",2))
    for r in range(4): add(AQ1+r, AQ1+r, AK0+r)
    lg.wait("sm")
    add(AK1, AK1, AK1+1); add(AK1+2, AK1+2, AK1+3)
    for r in range(4): add(AQ0+r, KX+r, AQ1+r)
    add(KX, AK1, AK1+2)
    a(f"v_max3_f32 v{m}, v{AQ0}, v{AQ0+1}, v{AQ0+2}")
    a(f"v_max3_f32 v{m}, v{m}, v{AQ0+3}, v{KX}")
    lg.wait("S4")
    v(4,0,SEL); ldsr(L, vR0, 2*16384, ("L",0))
    a(f"v_max_f32_dpp v{m}, v{m}, v{m} {QP}")
    a(f"v_mov_b32 v{m2}, v{m}")
    v(4,1,SEL); ldsr(L+4, vR0, 2*16384+1024, ("L",0))
    a(f"v_permlane16_swap_b32 v{m}, v{m2}")
    a(f"v_max_f32 v{m}, v{m}, v{m2}")
    a(f"v_mov_b32 v{m2}, v{m}")
    lg.wait("a0")
    v(5,0,B0); ldsr(SEL, vA, 7*1024, "S4")
    a(f"v_permlane32_swap_b32 v{m}, v{m2}")
    a(f"v_max_f32 v{m}, v{m}, v{m2}")
    v(5,1,B0); ldsr(L+8, vR0, 2*16384+2048, ("L",1))
    a(f"v_mul_f32 v{m}, s{sC}, v{m}")
    srcs = [AQ0,AQ0+1,AQ0+2,AQ0+3,KX]
    for s_ in srcs[:4]: a(f"v_fma_f32 v{s_}, v{s_}, s{sC}, -v{m}")
    lg.wait("a2")
    v(6,0,B2); ldsr(L+12, vR0, 2*16384+3072, ("L",1))
    for s_ in srcs[:2]: a(f"v_exp_f32 v{s_}, v{s_}")
    v(6,1,B2); ldsr(B0, vA, 1*1024, "a0")
    for s_ in srcs[2:4]: a(f"v_exp_f32 v{s_}, v{s_}")
    lg.wait("S4")
    v(7,0,SEL)
    c0,c1 = KX+2, KX+3
    BL, BH = AK0, AK1
    cvt(c0, AQ0, AQ0+1); cvt(c1, AQ0+2, AQ0+3)
    v(7,1,SEL)
    a(f"v_cndmask_b32 v{BL}, 0, v{c0}, {MH0}")
    a(f"v_cndmask_b32 v{BL+1}, 0, v{c1}, {MH0}")
    a(f"v_cndmask_b32 v{BH+2}, v{c0}, 0, {MH0}")
    a(f"v_cndmask_b32 v{BH+3}, v{c1}, 0, {MH0}")
    lg.wait("a0")
    v(1,0,B0)
    a(f"v_mov_b32_dpp v{BH}, v{BL} {QP}")
    v(1,1,B0)
    sp("bx")
    a(f"v_mov_b32_dpp v{BH+1}, v{BL+1} {QP}")
    a(f"v_mov_b32_dpp v{BL+2}, v{BH+2} {QP}")
    a(f"v_mov_b32_dpp v{BL+3}, v{BH+3} {QP}")
    a(f"v_fma_f32 v{KX}, v{KX}, s{sC}, -v{m}")
    vm.wait("vx")
    mf32(D, VX+4, BH)
    a(f"v_exp_f32 v{KX}, v{KX}")
    mf32(D, VX, BL, D)
    add(m, AQ0, AQ0+1); add(m2, AQ0+2, AQ0+3)
    a(f"v_cvt_pk_bf16_f32 v{KX+1}, v{KX}, 0")
    add(AV0, AV0, AV0+2); add(AV0+1, AV0+1, AV0+3)
    a(f"v_lshlrev_b32 v{KX+2}, 16, v{KX+1}")
    add(AV1, AV1, AV1+2); add(AV1+1, AV1+1, AV1+3)
    a(f"v_cndmask_b32 v{KX+4}, v{KX+2}, v{KX+1}, {MH0}")
    add(m, m, m2)
    BM = AQ0
    z2(BM+2)
    a(f"v_or_b32_dpp v{KX+4}, v{KX+4}, v{KX+4} {QP}")
    add(m, m, KX)
    cvt(KX, AV0, AV0+1); cvt(KX+1, AV1, AV1+1)
    a(f"v_cndmask_b32 v{BM}, 0, v{KX+4}, {MH0}")
    a(f"v_cndmask_b32 v{BM+1}, v{KX+4}, 0, {MH0}")
    a(f"v_add_f32_dpp v{m}, v{m}, v{m} {QP}")
    a(f"v_lshrrev_b32 v{vS}, 1, v{vA}")
    mf32(D, KX, BM, D)
    if not opt.get("nokv"): a(f"buffer_store_dwordx2 {vr(KX,2)}, v{vS}, {WS}, s{sVM} offen sc1"); vm.add("vm")
    a(f"v_mov_b32 v{m2}, v{m}")
    a(f"v_add_u32 v{vS}, s{sOW}, v{vA}")
    a(f"v_add_u32 v{vT}, {7*16384}, v{vR0}")
    a(f"v_permlane16_swap_b32 v{m}, v{m2}")
    add(m, m, m2)
    a(f"v_mov_b32 v{m2}, v{m}")
    a(f"""
    s_cmp_eq_u32 s{sSTEP}, 63
    s_cbranch_scc1 {P}done
    """)
    a(f"v_permlane32_swap_b32 v{m}, v{m2}")
    add(m, m, m2)
    a(f"v_rcp_f32 v{m}, v{m}")
    z2(SEL)
    for r in range(4): a(f"v_mul_f32 v{D+r}, v{D+r}, v{m}")
    cvt(KX+2, D, D+1); cvt(KX+3, D+2, D+3)
    a(f"ds_write_b64 v{vS}, {vr(KX+2,2)}"); lg.add("ow")
    sp("ow")
    z2(SEL+2)
    for r in range(0,16,2): z2(AQ0+r)
    for r in range(0,8,2): z2(VX+r)
    lg.wait("ow")
    a("s_barrier")
    OA = KX
    ldsr(OA, vA, 0, "o0"); ldsr(OA+4, vA, 8192, "o1")
    n0 = opt.get("n0", 2)
    def oread2(j):
        if j<4: ldsr(L+4*j, vT, j*1024, "O7")
        else: ldsr(A0+4*(j-4), vT, 16384+(j-4)*1024, "O8")
    for j in range(n0): oread2(j)
    sp("bar3")
    def wofrag(c,u):
        if c==7: return Lf(u)
        if c==8: return f"v[{A0+8*u}:{A0+8*u+7}]"
        return FR[("o",c,u)]
    accs = {0:SEL, 1:AQ0, 2:AQ1, 3:AK0, 4:AK1, 5:VX, 6:VX+4, 7:SEL, 8:AQ0}
    def pv(c):
        x = accs[c]
        return [f"v_add_f32 v{x}, v{x}, v{x+2}", f"v_add_f32 v{x+1}, v{x+1}, v{x+3}", f"v_cvt_pk_bf16_f32 v{x}, v{x}, v{x+1}\nv_bfi_b32 v{x}, 1, s{sTAG}, v{x}"]
    def ps(c):
        return f"buffer_store_dword v{accs[c]}, v{vQ}, {WS}, s{(sT0,sT1,sT2)[c>>2]} offen offset:{(c&3)*1024}{st}"
    order = [(c,u) for c in range(9) for u in range(2)]
    def oread(j):
        if j<4: ldsr(L+4*j, vT, j*1024, "O7")
        else: ldsr(A0+4*(j-4), vT, 16384+(j-4)*1024, "O8")
    Z = lambda r: f"v_mov_b64 v[{r}:{r+1}], 0"
    sal = {0:[f"s_add_u32 s{sT0}, s{sPARTW}, s{sHC}", f"s_add_u32 s{sKM}, s{sKM}, 0x20000"], 1:[f"s_add_u32 s{sT1}, s{sT0}, 4096", f"s_add_u32 s{sVM}, s{sVM}, 0x10000"],
           2:[f"s_add_u32 s{sT2}, s{sT0}, 8192", f"s_add_u32 s{sL0}, s{sRM}, s{sPARTW}"], 3:[f"s_add_u32 s{sL0+1}, s{sL0}, 36864", f"s_add_u32 s{sL0+2}, s{sL0}, {2*36864}"],
           4:[f"s_add_u32 s{sL0+3}, s{sL0}, {3*36864}", f"s_add_u32 s{sT4}, s{sRM}, s{sMEMW}"]}
    def pvl(c): return "\n".join(pv(c)).split("\n")
    vq = pvl(0)+pvl(1)+[Z(SEL),Z(SEL+2)]+pvl(2)+[Z(AQ0),Z(AQ0+2)]+pvl(3)+pvl(4)+pvl(5)+pvl(6)+pvl(7)
    per = {4:3,5:3,6:2,7:0,8:3,9:3,10:3,11:3,12:2,13:2,14:2,15:2,16:0,17:4}
    per = {4:3,5:3,6:2,7:3,8:3,9:3,10:3,11:2,12:2,13:3,14:1,15:4,16:0,17:4}
    stores = {6:[0],7:[1],9:[2],11:[3],13:[4],15:[5],16:[6]}
    sched = {}
    for i in range(18):
        n = per.get(i,0)
        sched[i] = ([ps(c) for c in stores.get(i,[])], vq[:n]); vq = vq[n:]
    assert not vq
    lg.wait("o0")
    for i,(c,u) in enumerate(order):
        if i==1: lg.wait("o1")
        if (c,u)==(7,0): lg.wait("O7")
        if (c,u)==(8,0): lg.wait("O8")
        smf(accs[c], OA+4*u, wofrag(c,u))
        for l in sal.get(i,[]): a(l)
        if i + n0 < 8 and i < 6: oread2(i + n0)
        if i == 5:
            for j in range(6 + n0, 8): oread2(j)
        mem, val = sched.get(i, ([],[]))
        for l in mem+val: a(l)
    a(ps(7))
    for l in pv(8): a(l)
    a(ps(8))
    sp("wo")
    RS, RD, R0 = VX, VX+4, A0
    a(f"""
    s_cmp_eq_u32 s{sRED}, -1
    {"s_branch" if comp_only else "s_cbranch_scc1"} {P}nored
    """)
    def loadsA():
        for mm in range(4):
            a(f"buffer_load_dwordx4 {vr(R0+4*mm)}, v{vRl}, {WS}, s{sL0+mm} offen sc1")
    lg.clear()
    ldsr(RS, vA, RSEL_OFF, "rs")
    a(f"s_cmp_lg_u32 s{sW}, 1\ns_cbranch_scc1 {P}pollA")
    delay(opt.get("dA", 256))
    a.label(P+"pollA")
    loadsA()
    rotate()
    if True:
        a(f"v_xor_b32 v{vT}, {1<<14}, v{vR1}")
        for p in range(4): ldsr(L+4*p, vR1, p*1024, "prep")
        for p in range(2): ldsr(KX+4*p, vT, p*1024, "prep")
        ldsr(SEL, vA, SEL_OFF, "prep")
        for r in range(0,16,2): z2(AQ0+r)
    a("s_waitcnt lgkmcnt(7)")
    a.label(P+"chkA")
    a(f"s_cmp_eq_u32 s{sT5}, 0\ns_cbranch_scc1 {P}chkA0")
    def chain(op):
        for mm in range(4):
            a(f"s_waitcnt vmcnt({3-mm})")
            b = R0+4*mm
            mf32(RD, RS, b, None if mm==0 else RD)
            if mm==0:
                a(f"v_bitop3_b32 v{vS}, v{b}, v{b+1}, v{b+2} bitop3:{op}"); a(f"v_bitop3_b32 v{vS}, v{vS}, v{b+3}, 1 bitop3:{op if op==0x80 else 0xfc}")
            else:
                a(f"v_bitop3_b32 v{vS}, v{vS}, v{b}, v{b+1} bitop3:{op}"); a(f"v_bitop3_b32 v{vS}, v{vS}, v{b+2}, v{b+3} bitop3:{op}")
    chain(0x80)
    a(f"v_cmp_ne_u32 vcc, 1, v{vS}")
    a(f"s_cbranch_vccnz {P}failA")
    a.label(P+"gotA")
    sp("gotA")
    a(f"""
    s_nop 3
    v_add_f32_dpp v{RD}, v{RD}, v{RD} row_ror:8 row_mask:0xf bank_mask:0xf
    v_add_f32_dpp v{RD+1}, v{RD+1}, v{RD+1} row_ror:8 row_mask:0xf bank_mask:0xf
    v_cvt_pk_bf16_f32 v{RD}, v{RD}, v{RD+1}
    buffer_store_dword v{RD}, v{vRs}, {WS}, s{sT4} offen{st}
    """)
    sp("pub")
    a(f"s_add_u32 s{sT0}, s{sRM}, s{sMEMA}")
    a(f"v_mov_b32 v{A2}, -1")
    a(f"buffer_store_dword v{A2}, v{vRs}, {WS}, s{sT0} offen{st}")
    for p in range(2,4): ldsr(KX+4*p, vT, p*1024, "prep")
    dump2()
    a(f"s_cmp_eq_u32 s{sW}, 1\ns_cbranch_scc1 {P}lateB")
    delay(opt.get("dB0", 128))
    a.label(P+"lateB")
    delay(opt.get("dB", 128) - (64 if stamps else 0))
    a(f"s_branch {P}pollB")
    a.label(P+"chkA0")
    chain(0xfe)
    a(f"v_and_b32 v{vS}, 1, v{vS}")
    a(f"v_cmp_ne_u32 vcc, 0, v{vS}")
    a(f"s_cbranch_vccz {P}gotA")
    a.label(P+"failA")
    cnt(0x10000)
    delay(opt.get("bA",0))
    loadsA()
    a(f"""
    s_sub_u32 s{sBUD}, s{sBUD}, 1
    s_cbranch_scc0 {P}chkA
    s_mov_b32 s{sBUD}, 0
    s_branch {P}gotA
    """)
    a.label(P+"retryB")
    cnt(1)
    delay(opt.get("bB",0))
    issueB()
    a(f"""
    s_sub_u32 s{sBUD}, s{sBUD}, 1
    s_cbranch_scc1 {P}giveupB
    s_nop 3
    """)
    for r in range(0,12,2): z2(AQ0+r)
    a(f"""
    s_branch {P}top
{P}giveupB:
    s_mov_b32 s{sBUD}, 0
    s_waitcnt vmcnt(0)
    s_branch {P}gotB
    """)
    if opt.get("kvcheck"):
        a.label(P+"kvwait")
        a(f"""
        v_lshlrev_b32 v{A2}, 3, v{vA}
        s_mov_b32 s{sT1}, {WS_FLAGS+FL_KV}
        s_mov_b64 exec, 0xff
        buffer_load_dword v{A3}, v{A2}, {WS}, s{sT1} offen sc1
        s_waitcnt vmcnt(0)
        v_cmp_le_u32 vcc, 32, v{A3}
        s_mov_b64 exec, -1
        s_ff0_i32_b32 s{sKVR}, vcc_lo
        s_lshl_b32 s{sKVR}, s{sKVR}, 3
        s_cmp_eq_u32 s{sKVR}, 64
        s_cselect_b32 s{sKVR}, 1000, s{sKVR}
        s_cmp_lt_u32 s{sT0}, s{sKVR}
        s_cbranch_scc1 {P}kvok
        s_sleep 4
        s_sub_u32 s{sBUD}, s{sBUD}, 1
        s_cbranch_scc0 {P}kvwait
        s_mov_b32 s{sBUD}, 0
        s_branch {P}kvok
        """)
    a.label(P+"nored")
    lg.clear()
    prep()
    rotate()
    dump2()
    delay(opt.get("dN", 512) - (64 if stamps else 0))
    a(f"s_branch {P}pollB")
    a.label(P+"done")
    if stamps:
        a(f"v_lshlrev_b32 v{vS}, 2, v{vA}")
        for i in range(len(names)): a(f"buffer_store_dword v{244+i}, v{vS}, {WS}, s{sSTO} offen offset:{4*i}")
        a(f"buffer_store_dword v255, v{vS}, {WS}, s{sSTO} offen offset:60")
    a(f"""
    s_waitcnt vmcnt(0) lgkmcnt(0)
    s_barrier
    s_mov_b64 exec, s[{sFm}:{sFm+1}]
    v_mov_b32 v{SEL}, 64
    buffer_store_dword v{SEL}, v{vA}, {WS}, s{sFLG} offen sc1
    s_mov_b64 exec, -1
    """)
    a.label(P+"exit")
    return len(names)

def rec_role(a, stamps=False, opt=None):
    rec_setup(a)
    rec_init_exchange(a)
    for w in range(1,4):
        a(f"s_cmp_eq_u32 s{sW}, {w}")
        a(f"s_cbranch_scc1 Lr_pro{w}")
    for w in range(4):
        a.label(f"Lr_pro{w}")
        rec_prologue_wave(a, w)
        if w < 3: a("s_branch Lr_prodone")
    a.label("Lr_prodone")
    a(f"""
    v_lshrrev_b32 v10, 2, v{vA}
    v_and_b32 v10, 127, v10
    s_mov_b32 s{sT1}, 0x4000000
Lr_wbar:
    buffer_load_dword v11, v10, {srd(S_DBG)}, 0 offen offset:128 sc1
    s_sub_u32 s{sT1}, s{sT1}, 1
    s_cmp_eq_u32 s{sT1}, 0
    s_cbranch_scc1 Lr_exit
    s_waitcnt vmcnt(0)
    v_cmp_eq_u32 vcc, 0, v11
    s_cbranch_vccnz Lr_wbar
    """)
    if (opt or {}).get("kvcheck"):
        a(f"""
    v_mov_b32 v10, 0
Lr_winit:
    buffer_load_dword v12, v10, {srd(S_DBG)}, 0 offen offset:{DB_INIT} sc1
    s_sub_u32 s{sT1}, s{sT1}, 1
    s_cmp_eq_u32 s{sT1}, 0
    s_cbranch_scc1 Lr_exit
    s_waitcnt vmcnt(0)
    v_cmp_eq_u32 vcc, 0, v12
    s_cbranch_vccnz Lr_winit
    """)
    a(f"""
    s_add_u32 s{sT0}, s{sXCC}, 1
    v_cmp_ne_u32 vcc, s{sT0}, v11
    s_cbranch_vccnz Lr_slow
    s_memrealtime s[96:97]
    """)
    n = rec_loop(a, "f", stamps, opt)
    a("s_branch Lr_exit")
    a.label("Lr_slow")
    rec_loop(a, "s", False, opt)
    a.label("Lr_exit")
    return n
```

```python
import sys
from common import *
from emit import *
import rec, par
from rec import *
from par import *
NAME = "recurrent_scan__memory_aug_recurrent_mem_tr__geglu_ffn__prompt"
def generate(opt=None):
    opt = opt or {}
    a = Asm()
    a("s_cmp_ge_u32 s2, 256\ns_cbranch_scc1 L_end")
    srds = [(S_WS,104,WS_SIZE),(S_WQ,16,576*8192),(S_WK,24,576*8192),(S_WV,32,576*8192),(S_WO,40,576*8192),(S_M0,8,9216),(S_DBG,96,256),
            (S_X,0,2048*1152),(S_WG,64,576*9216),(S_WU,72,576*9216),(S_WD,80,4608*1152),(S_OUT,88,2048*1152)]
    for b,k,sz in srds: a(f"s_load_dwordx2 s[{b}:{b+1}], s[0:1], {k}")
    for b,k,sz in srds: a(f"s_mov_b32 s{b+2}, {sz}\ns_mov_b32 s{b+3}, 0x20000")
    a(f"""
    s_getreg_b32 s{sXCC}, hwreg(HW_REG_XCC_ID, 0, 4)
    v_lshrrev_b32 v1, 6, v0
    s_nop 0
    v_readfirstlane_b32 s{par.sW}, v1
    s_waitcnt lgkmcnt(0)
    """)
    if opt.get("timing"): a("s_memrealtime s[4:5]")
    a(f"""
    s_cmp_lg_u32 s2, 0
    s_cbranch_scc1 L_noinit
    v_lshlrev_b32 v1, 4, v0
    v_mov_b64 v[4:5], 0
    v_mov_b64 v[6:7], 0
    """)
    for i in range(FL_CNT_BYTES//4096):
        a(f"s_mov_b32 s{t0}, {WS_FLAGS+FL_CNT+i*4096}\nbuffer_store_dwordx4 v[4:7], v1, {WS}, s{t0} offen sc1")
    a(f"""
    s_waitcnt vmcnt(0)
    s_barrier
    v_mov_b32 v1, 1
    v_mov_b32 v2, 0
    s_mov_b64 exec, 1
    buffer_store_dword v1, v2, {DBG}, 0 offen offset:{DB_INIT} sc1
    s_mov_b64 exec, -1
L_noinit:
    """)
    sel = opt.get("recsel", "xcc")
    if sel == "xcc":
        a(f"s_cmp_lg_u32 s{sXCC}, 0\ns_cbranch_scc1 L_par")
    elif sel == "low":
        a(f"s_cmp_ge_u32 s2, 32\ns_cbranch_scc1 L_par")
    elif sel == "none":
        a("s_branch L_par")
    wg_atomic(a, DB_ROLE, sH, "role")
    a(f"s_cmp_lt_u32 s{sH}, 32\ns_cbranch_scc1 L_rec")
    a.label("L_par")
    a(f"""
    s_add_u32 s{sQ}, s{sXCC}, 6
    s_mul_hi_u32 s{t0}, s{sQ}, {(2**32+6)//7}
    s_mul_i32 s{t0}, s{t0}, 7
    s_sub_u32 s{sQ}, s{sQ}, s{t0}          ; queue = (xcc + 6) % 7
    s_cmp_lg_u32 s{par.sW}, 0
    s_cbranch_scc1 L_cl0
    s_lshl_b32 s{t0}, s{sQ}, 2
    s_add_u32 s{t0}, s{t0}, {DB_G1Q}
    v_mov_b32 v2, {DB_LNQ}
    v_writelane_b32 v2, s{t0}, 1
    v_mov_b32 v1, 1
    v_lshlrev_b32 v3, 2, v0
    s_mov_b64 exec, 3
    buffer_atomic_add v1, v2, {DBG}, 0 offen sc0
    s_waitcnt vmcnt(0)
    ds_write_b32 v3, v1
    s_mov_b64 exec, -1
    s_waitcnt lgkmcnt(0)
L_cl0:
    s_barrier
    v_mov_b32 v2, 0
    ds_read_b64 v[4:5], v2
    s_waitcnt lgkmcnt(0)
    v_readfirstlane_b32 s{t0}, v4
    v_readfirstlane_b32 s87, v5
    s_barrier
L_lnq:
    s_cmp_ge_u32 s{t0}, 128
    s_cbranch_scc1 L_g1
    s_mov_b32 s86, s{t0}
    """)
    ln_task(a)
    wait_ge(a, DBG, f"{DB_INIT}", 1, "init", sleep=1)
    a(f"s_lshr_b32 s{t0}, s86, 4\ns_lshl_b32 s{t0}, s{t0}, 7\ns_add_u32 s{t0}, s{t0}, {WS_FLAGS+FL_LN}")
    signal(a, t0, "ln")
    a(f"""
    v_mov_b32 v2, 0
    s_cmp_lg_u32 s{par.sW}, 0
    s_cbranch_scc1 L_ln2
    buffer_load_dword v1, v2, {DBG}, 0 offen offset:{DB_LNQ} sc1
    s_waitcnt vmcnt(0)
    ds_write_b32 v2, v1
    s_waitcnt lgkmcnt(0)
L_ln2:
    s_barrier
    ds_read_b32 v1, v2
    s_waitcnt lgkmcnt(0)
    v_readfirstlane_b32 s{t0}, v1
    s_nop 3
    s_cmp_ge_u32 s{t0}, 128
    s_cbranch_scc1 L_g1b
    """)
    wg_atomic(a, DB_LNQ, t0, "lnq")
    a("s_branch L_lnq")
    a.label("L_g1")
    wait_ge(a, DBG, f"{DB_INIT}", 1, "init2", sleep=1)
    a.label("L_g1b")
    a("s_barrier")
    par.G1T['on'] = bool(opt.get("g1t"))
    if opt.get("g1t"):
        a("s_memrealtime s[98:99]\ns_waitcnt lgkmcnt(0)\ns_mov_b32 s101, s98\ns_sub_u32 s94, s98, s4")
        for i in range(6): a(f"s_mov_b32 s{88+i}, 0")
        a("s_mov_b32 s95, 0")
    a(f"s_mov_b32 s{t2}, s87")
    gemm1_role(a, opt)
    a.label("L_g1done")
    if opt.get("g1t"):
        for i in range(8): a(f"v_mov_b32 v{20+i}, s{88+i}")
        a(f"""
        s_lshl_b32 s{t0}, s2, 5
        s_add_u32 s{t0}, s{t0}, {WS_STAMP+16384}
        v_mov_b32 v14, 0
        s_mov_b64 exec, 1
        buffer_store_dwordx4 v[20:23], v14, {WS}, s{t0} offen
        buffer_store_dwordx4 v[24:27], v14, {WS}, s{t0} offen offset:16
        s_mov_b64 exec, -1
        """)
    wg_atomic(a, DB_ROLE, t0, "peek", inc=0)
    a(f"s_cmp_ge_u32 s{t0}, 32\ns_cbranch_scc1 L_p23")
    wg_atomic(a, DB_ROLE, sH, "role2")
    a(f"s_cmp_lt_u32 s{sH}, 32\ns_cbranch_scc1 L_rec")
    a.label("L_p23")
    a(f"""
    s_add_u32 s{sQ}, s{sXCC}, 6
    s_mul_hi_u32 s{t0}, s{sQ}, {(2**32+6)//7}
    s_mul_i32 s{t0}, s{t0}, 7
    s_sub_u32 s{sQ}, s{sQ}, s{t0}
L_p23q:
    s_lshl_b32 s86, s{sQ}, 2
    """)
    wg_atomic(a, DB_P23, t1, "p23", soff="s86")
    a(f"s_cmp_lt_u32 s{t1}, 31\ns_cbranch_scc1 L_p23go")
    steal(a, DB_P23, 31, "p23", t3)
    a(f"""
    s_cmp_eq_u32 s{t3}, 0
    s_cbranch_scc1 L_fin
    s_ff1_i32_b32 s{sQ}, s{t3}
    s_branch L_p23q
L_p23go:
    s_mul_i32 s{t0}, s{sQ}, 31
    s_add_u32 s{t0}, s{t0}, s{t1}
    s_cmp_ge_u32 s{t0}, 216
    s_cbranch_scc1 L_p23q
    """)
    par.TIM['on'] = bool(opt.get("timing"))
    p23_role(a)
    if opt.get("timing"):
        a("s_waitcnt lgkmcnt(0)")
        for i in range(6): a(f"v_mov_b32 v{20+i}, s{88+2*i}")
        a(f"""
        v_mov_b32 v26, s72
        v_mov_b32 v27, s73
        s_lshl_b32 s{t0}, s2, 5
        s_add_u32 s{t0}, s{t0}, {WS_STAMP+4096}
        v_mov_b32 v14, 0
        s_mov_b64 exec, 1
        buffer_store_dwordx4 v[20:23], v14, {WS}, s{t0} offen
        buffer_store_dwordx4 v[24:27], v14, {WS}, s{t0} offen offset:16
        s_mov_b64 exec, -1
        """)
    a("s_branch L_fin")
    a.label("L_rec")
    ro = dict(kvcheck=1); ro.update(opt.get("rec", {}))
    rec_role(a, False, ro)
    if ro.get("steptime"):
        a(f"""
        s_lshl_b32 s{t0}, s{sH}, 9
        s_add_u32 s{t0}, s{t0}, {WS_STAMP+32768}
        v_lshrrev_b32 v10, 1, v0
        buffer_store_dwordx2 v[254:255], v10, {WS}, s{t0} offen
        """)
    a.label("L_fin")
    if opt.get("timing"):
        a(f"""
        s_memrealtime s[6:7]
        s_waitcnt lgkmcnt(0)
        v_mov_b32 v10, s4
        v_mov_b32 v11, s6
        v_mov_b32 v12, s96
        v_mov_b32 v13, s{sXCC}
        s_lshl_b32 s{t0}, s2, 4
        s_add_u32 s{t0}, s{t0}, {WS_STAMP}
        v_mov_b32 v14, 0
        s_mov_b64 exec, 1
        buffer_store_dwordx4 v[10:13], v14, {WS}, s{t0} offen
        """)
    a("s_waitcnt vmcnt(0)")
    a.label("L_end")
    lines = check_seq(a.lines, fix=True)
    body = "\n".join(("" if l.endswith(":") else "    ")+l for l in lines if not l.startswith("; SP"))
    hdr = open("cdna_kernels/"+NAME+".s.ref").read().split("; Override launch")[0]
    return hdr + "; @launch grid=(256,1,1) block=(256,1,1) lds=163840\n" + '.amdgcn_target "amdgcn-amd-amdhsa--gfx950"\n' + kernel_text(NAME+"_kernel", body, vgpr=512, sgpr=102, accum=256)

if __name__ == "__main__":
    out = sys.argv[1]
    opt = eval(sys.argv[2]) if len(sys.argv) > 2 else {}
    src = generate(opt)
    if out == "final":
        open("cdna_kernels/"+NAME+".s","w").write(src); print("written", len(src), "bytes")
    else:
        from cdna_launch import with_harness_metadata
        import subprocess
        open(out+".s","w").write(src)
        open(out+".harness.s","w").write(with_harness_metadata(src, NAME+"_kernel", 14, launch_lists=True))
        r = subprocess.run(["clang","-x","assembler","-target","amdgcn-amd-amdhsa","-mcpu=gfx950",out+".harness.s","-o",out+".co"],capture_output=True,text=True)
        print(r.stderr[:3000] if r.returncode else f"ok {len(src)} bytes")
```

```python
WS_SIZE  = 0x10000000
WS_FLAGS = 0x0000000
WS_PART  = 0x0010000
PART_SLOT= 0x48000
WS_MEMX  = 0x00F0000
MEM_SLOT = 0x4000
WS_STAMP = 0x0880000
WS_XN    = 0x0100000
WS_KX    = 0x1000000
WS_VX    = 0x2000000
WS_QX    = 0x3000000
WS_KM    = 0x4000000
WS_VM    = 0x4800000
WS_H     = 0x5000000
WS_O     = 0x7000000
FL_KVM   = 0x0000
FL_CNT   = 0x1000
FL_LN    = FL_CNT + 0x0000
FL_EXP   = FL_CNT + 0x0400
FL_KV    = FL_CNT + 0x0480
FL_Q     = FL_CNT + 0x0880
FL_H     = FL_CNT + 0x0C80
FL_O     = FL_CNT + 0x1080
FL_CNT_BYTES = 0x4000
DB_ROLE, DB_INIT, DB_P23, DB_G1Q, DB_TAB = 0, 160, 64, 32, 128
```

```python
from emit import *
from layout import *
from rec import Q, vr, srd, f2u, S_WS, S_WQ, S_WK, S_WV, S_WO, S_M0, S_DBG
S_X, S_WG, S_WU, S_WD, S_OUT, S_CUR = 36, 40, 44, 48, 52, 56
sW, sXCC = 60, 62
t0,t1,t2,t3,t4,t5,t6,t7 = 64,65,66,67,68,69,70,71
WS = srd(S_WS); DBG = srd(S_DBG)

def wg_atomic(a, off, dst, tag, buf=DBG, soff="0", inc=1):
    a(f"""
    s_barrier
    s_cmp_lg_u32 s{sW}, 0
    s_cbranch_scc1 Lat_{tag}
    v_mov_b32 v1, {inc}
    v_mov_b32 v2, 0
    s_mov_b64 exec, 1
    buffer_atomic_add v1, v2, {buf}, {soff} offen offset:{off} sc0
    s_waitcnt vmcnt(0)
    ds_write_b32 v2, v1
    s_mov_b64 exec, -1
    s_waitcnt lgkmcnt(0)
Lat_{tag}:
    s_barrier
    v_mov_b32 v2, 0
    ds_read_b32 v1, v2
    s_waitcnt lgkmcnt(0)
    v_readfirstlane_b32 s{dst}, v1
    s_barrier
    """)

def signal(a, soff, tag):
    a(f"""
    s_waitcnt vmcnt(0)
    s_barrier
    s_cmp_lg_u32 s{sW}, 0
    s_cbranch_scc1 Lsg_{tag}
    v_mov_b32 v1, 1
    v_mov_b32 v2, 0
    s_mov_b64 exec, 1
    buffer_atomic_add v1, v2, {WS}, s{soff} offen
    s_mov_b64 exec, -1
Lsg_{tag}:
    """)

def wait_ge(a, buf, soff, val, tag, tmp=t7, sleep=4, voff=None):
    a(f"""
    s_mov_b32 s{tmp}, 0x800000
    v_mov_b32 v2, 0
Lw_{tag}:
    buffer_load_dword v1, v2, {buf}, {soff} offen sc1
    s_sub_u32 s{tmp}, s{tmp}, 1
    s_cbranch_scc1 Lwd_{tag}
    s_waitcnt vmcnt(0)
    v_cmp_gt_u32 vcc, {val}, v1
    s_cbranch_vccz Lwd_{tag}
    s_sleep {sleep}
    s_branch Lw_{tag}
Lwd_{tag}:
    s_waitcnt vmcnt(0)
    """)

def wait_ge_wg(a, buf, soff, val, tag, tmp=t7, sleep=2):
    a(f"""
    s_cmp_lg_u32 s{sW}, 0
    s_cbranch_scc1 Lwd_{tag}
    s_mov_b32 s{tmp}, 0x800000
    v_mov_b32 v2, 0
    s_mov_b64 exec, 1
Lw_{tag}:
    buffer_load_dword v1, v2, {buf}, {soff} offen sc1
    s_sub_u32 s{tmp}, s{tmp}, 1
    s_cbranch_scc1 Lwe_{tag}
    s_waitcnt vmcnt(0)
    v_cmp_gt_u32 vcc, {val}, v1
    s_cbranch_vccz Lwe_{tag}
    s_sleep {sleep}
    s_branch Lw_{tag}
Lwe_{tag}:
    s_waitcnt vmcnt(0)
    s_mov_b64 exec, -1
Lwd_{tag}:
    s_barrier
    """)

def rne_bf16(a, r, tmp):
    a(f"v_cvt_pk_bf16_f32 v{r}, v{r}, v{r}")
    a(f"v_and_b32 v{r}, 0xffff0000, v{r}")

def ln_task(a):
    X0, F = 16, 40
    a(f"""
    v_and_b32 v3, 63, v0
    v_and_b32 v4, 15, v3
    v_mul_u32_u24 v4, 1152, v4
    v_lshrrev_b32 v5, 4, v3
    v_lshl_add_u32 v4, v5, 4, v4          ; t*1152 + g*16
    v_lshlrev_b32 v5, 4, v3               ; lane*16
    s_mul_i32 s{t1}, s{sW}, 5
    s_cmp_eq_u32 s{sW}, 3
    s_cselect_b32 s{t1}, 14, s{t1}
    s_mul_i32 s{t2}, s{t0}, {16*1152}
    s_lshl_b32 s{t4}, s{t1}, 6
    s_add_u32 s{t2}, s{t2}, s{t4}
    s_mul_i32 s{t3}, s{t0}, 18
    s_add_u32 s{t3}, s{t3}, s{t1}
    s_lshl_b32 s{t3}, s{t3}, 10
    s_add_u32 s{t3}, s{t3}, {WS_XN}
    s_cmp_lt_u32 s{sW}, 2
    s_cselect_b32 s{t4}, 0, 0x40000000
    s_add_u32 s{t5}, s{t4}, s{t2}
    s_add_u32 s{t6}, s{t4}, s{t3}
    s_add_u32 s{t6}, s{t6}, 4096
    """)
    for ks in range(5):
        a(f"buffer_load_dwordx4 {vr(X0+4*ks)}, v4, {srd(S_X)}, s{t5 if ks==4 else t2} offen offset:{ks*64}")
    a(f"""
    v_lshlrev_b32 v12, 2, v0               ; tid*4
    v_and_b32 v13, 15, v0
    v_lshlrev_b32 v13, 2, v13              ; token*4
    v_mov_b32 v6, 0
    v_mov_b32 v7, 0
    """)
    for ks in range(5):
        a(f"s_waitcnt vmcnt({4-ks})")
        for j in range(4):
            s_ = X0+4*ks+j; d = F+8*ks+2*j
            a(f"v_lshlrev_b32 v{d}, 16, v{s_}")
            a(f"v_and_b32 v{d+1}, 0xffff0000, v{s_}")
            a(f"v_add_f32 v6, v6, v{d}")
            a(f"v_add_f32 v7, v7, v{d+1}")
    def xsum(r, off):
        a(f"ds_write_b32 v12, v{r} offset:{off}\ns_waitcnt lgkmcnt(0)\ns_barrier")
        for i in range(8): a(f"ds_read2_b32 v[{84+2*i}:{85+2*i}], v13 offset0:{off//4+32*i} offset1:{off//4+32*i+16}" if off//4+32*i+16 < 256 else
                            f"ds_read2st64_b32 v[{84+2*i}:{85+2*i}], v13 offset0:0 offset1:0")
    def xsum(r, off):
        a(f"ds_write_b32 v12, v{r} offset:{off}\ns_waitcnt lgkmcnt(0)\ns_barrier")
        for i in range(16): a(f"ds_read_b32 v{84+i}, v13 offset:{off+64*i}")
        a("s_waitcnt lgkmcnt(0)")
        for st in (8,4,2,1):
            for i in range(st): a(f"v_add_f32 v{84+i}, v{84+i}, v{84+st+i}")
        a(f"v_mul_f32 v{r}, {f2u(1.0/576):#x}, v84")
    a("v_add_f32 v6, v6, v7")
    xsum(6, 256)
    a("v_mov_b32 v7, 0\nv_mov_b32 v8, 0")
    for i in range(0,40,2):
        if i == 32: a(f"s_cmp_lt_u32 s{sW}, 2\ns_cbranch_scc0 Lln_v4")
        a(f"v_sub_f32 v10, v{F+i}, v6")
        a(f"v_sub_f32 v11, v{F+i+1}, v6")
        a(f"v_fmac_f32 v7, v10, v10")
        a(f"v_fmac_f32 v8, v11, v11")
    a.label("Lln_v4")
    a("v_add_f32 v7, v7, v8")
    xsum(7, 1280)
    rne_bf16(a, 6, 9); rne_bf16(a, 7, 9)
    a(f"v_add_f32 v7, {f2u(1e-5):#x}, v7")
    rne_bf16(a, 7, 9)
    a("v_sqrt_f32 v7, v7\ns_nop 0")
    rne_bf16(a, 7, 9)
    a("v_rcp_f32 v8, v7\ns_nop 0")
    for ks in range(5):
        for j in range(4):
            d = F+8*ks+2*j; o = X0+4*ks+j
            a(f"v_sub_f32 v{d}, v{d}, v6")
            a(f"v_sub_f32 v{d+1}, v{d+1}, v6")
            a(f"v_cvt_pk_bf16_f32 v10, v{d}, v{d+1}")
            a(f"v_lshlrev_b32 v{d}, 16, v10")
            a(f"v_and_b32 v{d+1}, 0xffff0000, v10")
            a(f"v_mul_f32 v{d}, v{d}, v8")
            a(f"v_mul_f32 v{d+1}, v{d+1}, v8")
            a(f"v_cvt_pk_bf16_f32 v{o}, v{d}, v{d+1}")
        if ks < 4: a(f"buffer_store_dwordx4 {vr(X0+4*ks)}, v5, {WS}, s{t3} offen offset:{ks*1024} sc1")
        else: a(f"buffer_store_dwordx4 {vr(X0+4*ks)}, v5, {WS}, s{t6} offen sc1")

NSLOT = 5
G1T = {'on':False}
def tacc(a, i):
    if G1T['on']:
        a(f's_memrealtime s[98:99]\ns_waitcnt lgkmcnt(0)\ns_sub_u32 s100, s98, s101\ns_mov_b32 s101, s98\ns_add_u32 s{88+i}, s{88+i}, s100')
sQ, sLNOK = 84, 85
def steal(a, off, limit, tag, dst):
    a(f"""
    s_cmp_lg_u32 s{sW}, 0
    s_cbranch_scc1 Lst_{tag}
    v_and_b32 v1, 7, v0
    v_lshlrev_b32 v1, 2, v1
    buffer_load_dword v2, v1, {DBG}, 0 offen offset:{off} sc1
    s_waitcnt vmcnt(0)
    {"v_cmp_gt_u32 vcc, 16, v1" if limit is None else ""}
    {"v_mov_b32 v1, 100" if limit is None else ""}
    {"v_addc_co_u32 v1, vcc, 0, v1, vcc" if limit is None else ""}
    s_waitcnt vmcnt(0)
    v_cmp_gt_u32 vcc, {"v1" if limit is None else limit}, v2
    s_and_b32 s{dst}, vcc_lo, 0x7f
    v_mov_b32 v2, s{dst}
    v_mov_b32 v1, 0
    ds_write_b32 v1, v2
    s_waitcnt lgkmcnt(0)
Lst_{tag}:
    s_barrier
    v_mov_b32 v1, 0
    ds_read_b32 v2, v1
    s_waitcnt lgkmcnt(0)
    v_readfirstlane_b32 s{dst}, v2
    s_barrier
    """)

def gemm1_role(a, opt):
    sRB, sKIND, sActO, sWO, sStr, sOutO, sM0a, sM0w, sTmp, sCnt = 72,74,75,76,77,78,79,80,81,82
    sKINDc, sOutc, sCntc, sCntp, sNext, sHN, sHalf = 73, 83, 86, 87, 96, 61, 63
    s4r, s16r, s32r = t4, t5, t6
    vL16, vDW, vRa, vRw0, vRw1, vTa, vTk = 3,4,5,6,7,8,9
    vX = 16
    FA = [128, 192]
    def dma_w(ks):
        base = (ks % NSLOT)*32768
        g = []
        for n,lo in enumerate((0,1024,4096,5120)):
            off = {0:f"s_mov_b32 s{sTmp}, s{sWO}", 1:f"s_add_u32 s{sTmp}, s{sWO}, s{s4r}", 2:f"s_add_u32 s{sTmp}, s{sWO}, s{s16r}", 3:f"s_add_u32 s{sTmp}, s{sTmp}, s{s4r}"}[n]
            l = [f"s_add_u32 m0, s{sM0w}, {base+lo}", off, f"buffer_load_dwordx4 v{vDW}, {srd(S_CUR)}, s{sTmp} offen lds"]
            if n==3: l.append(f"s_add_u32 s{sWO}, s{sWO}, s{s32r}")
            g.append(l)
        return g
    def dma_a(ks):
        base = (ks % NSLOT)*32768
        return [[f"s_add_u32 m0, s{sM0a}, {base + i*1024}", f"s_add_u32 s{sTmp}, s{sActO}, {i*18*1024 + ks*1024}",
                 f"buffer_load_dwordx4 v{vL16}, {WS}, s{sTmp} offen sc1 lds"] for i in range(4)]
    def remap(reg):
        a(f"""
        s_cmp_lt_u32 s{sQ}, 4
        s_cselect_b32 s{t1}, 5, 4
        s_cmp_lt_u32 s{reg}, s{t1}
        s_cselect_b32 s{sHN}, 0, 2
        s_cselect_b32 s{t3}, 0, s{t1}
        s_sub_u32 s{reg}, s{reg}, s{t3}
        s_cmp_lt_u32 s{reg}, s{t3}
        s_cselect_b32 s{sHN}, 1, s{sHN}
        """)
    def decode_and_start(tag):
        a(f"""
        s_mul_hi_u32 s{sRB}, s{t2}, {(2**32+11)//12}
        s_mul_i32 s{t1}, s{sRB}, 12
        s_sub_u32 s{t1}, s{t2}, s{t1}
        s_mul_i32 s{t1}, s{t1}, 7
        s_add_u32 s{t1}, s{t1}, s{sQ}
        s_lshr_b32 s{t2}, s{sW}, 1
        s_and_b32 s{t3}, s{sW}, 1
        s_cmp_ge_u32 s{t1}, 48
        s_cbranch_scc1 Lg1_gu_{tag}
        s_mov_b32 s{sStr}, 8192
        s_cmp_ge_u32 s{t1}, 32
        s_cbranch_scc1 Lg1_q_{tag}
        s_and_b32 s{sKIND}, s{t1}, 1
        s_lshr_b32 s{t4}, s{t1}, 1
        s_cmp_eq_u32 s{sKIND}, 0
        s_cselect_b32 s{S_CUR}, s{S_WK}, s{S_WV}
        s_cselect_b32 s{S_CUR+1}, s{S_WK+1}, s{S_WV+1}
        s_add_u32 s{sOutO}, s{sKIND}, 1
        s_lshl_b32 s{sOutO}, s{sOutO}, 24
        s_mov_b32 s{sCnt}, {WS_FLAGS+FL_KV}
        s_branch Lg1_kvq_{tag}
Lg1_q_{tag}:
        s_mov_b32 s{sKIND}, 2
        s_sub_u32 s{t4}, s{t1}, 32
        s_mov_b32 s{S_CUR}, s{S_WQ}
        s_mov_b32 s{S_CUR+1}, s{S_WQ+1}
        s_mov_b32 s{sOutO}, {WS_QX}
        s_mov_b32 s{sCnt}, {WS_FLAGS+FL_Q}
Lg1_kvq_{tag}:
        s_mov_b32 s{S_CUR+2}, {576*8192}
        s_lshl_b32 s{sWO}, s{t4}, 9
        s_lshl_b32 s{t5}, s{t2}, 8
        s_add_u32 s{sWO}, s{sWO}, s{t5}
        s_lshl_b32 s{t5}, s{t4}, 1
        s_add_u32 s{t5}, s{t5}, s{t3}
        s_lshl_b32 s{t5}, s{t5}, 13
        s_add_u32 s{sOutO}, s{sOutO}, s{t5}
        s_lshl_b32 s{t5}, s{sRB}, 1
        s_add_u32 s{t5}, s{t5}, s{t2}
        s_lshl_b32 s{t5}, s{t5}, 20
        s_add_u32 s{sOutO}, s{sOutO}, s{t5}
        s_lshl_b32 s{t5}, s{t3}, 13
        s_add_u32 s{t6}, s{t5}, 128
        s_branch Lg1_dec_{tag}
Lg1_gu_{tag}:
        s_mov_b32 s{sKIND}, 3
        s_mov_b32 s{sStr}, 9216
        s_sub_u32 s{t4}, s{t1}, 48
        s_cmp_eq_u32 s{t2}, 0
        s_cselect_b32 s{S_CUR}, s{S_WG}, s{S_WU}
        s_cselect_b32 s{S_CUR+1}, s{S_WG+1}, s{S_WU+1}
        s_mov_b32 s{S_CUR+2}, {576*9216}
        s_lshl_b32 s{sWO}, s{t4}, 8
        s_mov_b32 s{sCnt}, {WS_FLAGS+FL_H}
        s_lshl_b32 s{t5}, s{sRB}, 1
        s_add_u32 s{t5}, s{t5}, s{t2}
        s_mul_i32 s{sOutO}, s{t5}, {4*2*144*1024}
        s_lshl_b32 s{t5}, s{t4}, 1
        s_add_u32 s{t5}, s{t5}, s{t3}
        s_lshl_b32 s{t5}, s{t5}, 11
        s_add_u32 s{sOutO}, s{sOutO}, s{t5}
        s_add_u32 s{sOutO}, s{sOutO}, {WS_H}
        s_lshl_b32 s{t5}, s{t3}, 7
        s_add_u32 s{t6}, s{t5}, 8192
Lg1_dec_{tag}:
        s_mov_b32 s{S_CUR+3}, 0x20000
        s_lshl_b32 s{sTmp}, s{sRB}, 7
        s_add_u32 s{sCnt}, s{sCnt}, s{sTmp}
        v_and_b32 v11, 63, v0
        v_lshrrev_b32 v12, 4, v11
        s_lshl_b32 s{sTmp}, s{t3}, 2
        v_or_b32 v13, s{sTmp}, v12
        v_lshlrev_b32 v13, 1, v13
        v_and_b32 v14, 15, v11
        v_xor_b32 v13, v13, v14
        s_lshl_b32 s{sTmp}, s{t3}, 3
        v_add_u32 v12, s{sTmp}, v12
        v_mul_lo_u32 v12, v12, s{sStr}
        v_lshl_add_u32 v{vDW}, v13, 4, v12
        v_xor_b32 v{vRw0}, s{t5}, v10
        v_xor_b32 v{vRw1}, s{t6}, v10
        s_lshl_b32 s{sActO}, s{sRB}, 4
        s_lshl_b32 s{sTmp}, s{sW}, 2
        s_add_u32 s{sActO}, s{sActO}, s{sTmp}
        s_mul_i32 s{sActO}, s{sActO}, {18*1024}
        s_add_u32 s{sActO}, s{sActO}, {WS_XN}
        s_lshl_b32 s{s4r}, s{sStr}, 2
        s_lshl_b32 s{s16r}, s{sStr}, 4
        s_lshl_b32 s{s32r}, s{sStr}, 5
        s_bitcmp1_b32 s{sLNOK}, s{sRB}
        s_cbranch_scc1 Lg1_lnok_{tag}
        """)
        for ks in range(4):
            for gl in dma_w(ks):
                for l in gl: a(l)
        a(f"s_lshl_b32 s{sTmp}, s{sRB}, 7\ns_add_u32 s{t3}, s{sTmp}, {WS_FLAGS+FL_LN}")
        wait_ge_wg(a, WS, f"s{t3}", 16, "ln"+tag, sleep=1)
        a(f"s_bitset1_b32 s{sLNOK}, s{sRB}")
        for ks in range(4):
            for gl in dma_a(ks):
                for l in gl: a(l)
        a(f"s_waitcnt vmcnt(0)\ns_branch Lg1_started_{tag}")
        a.label(f"Lg1_lnok_{tag}")
        for ks in range(4):
            for gl in dma_w(ks)+dma_a(ks):
                for l in gl: a(l)
        a.label(f"Lg1_started_{tag}")
        for i in range(8):
            a(f"v_xor_b32 v{vX+8+i}, {(i&3)*32}, v{vRw0 if i<4 else vRw1}")
    def addr(ks):
        base = (ks % NSLOT)*32768
        return [f"v_add_u32 v{vTa}, {base}, v{vRa}"] + [f"v_add_u32 v{vX+i}, {base+16384}, v{vX+8+i}" for i in range(8)]
    def areads(ks, J=8):
        F = FA[ks&1]
        return [f"ds_read_b128 {vr(F+4*j)}, v{vTa} offset:{j*1024}" for j in range(J)]
    def wreads(ks):
        F = FA[ks&1]
        return [f"ds_read_b64_tr_b16 {vr(F+32+4*i+2*jj,2)}, v{vX+i} offset:{jj*1024}" for i in range(8) for jj in range(2)]
    acc = lambda i,j: f"a[{4*(8*i+j)}:{4*(8*i+j)+3}]"
    EXTRA = 16
    def mainloop(actA, tag, J=8):
        a(f"s_waitcnt vmcnt({24+EXTRA})")
        a("s_barrier")
        tacc(a,2)
        if G1T['on']: a("s_memtime s[6:7]\ns_waitcnt lgkmcnt(0)\ns_mov_b32 s97, s6")
        for l in addr(0)+areads(0,J)+wreads(0): a(l)
        for ks in range(18):
            F = FA[ks&1]
            if ks < 17:
                n = 16+EXTRA if ks < 3 else 8*(min(ks+3,17)-(ks+1))
                a(f"s_waitcnt vmcnt({n}) lgkmcnt(0)")
                a("s_barrier")
            else:
                a("s_waitcnt lgkmcnt(0)")
            rd_ = []; dm = []
            if ks < 17:
                ad = addr(ks+1); ar = areads(ks+1,J); wr = wreads(ks+1)
                if J == 8: rd_ = [[ad[0]]] + [[ar[j], ad[j+1]] for j in range(8)] + [[l] for l in wr]
                else: rd_ = [[ad[0]]] + [[ar[j], ad[2*j+1], ad[2*j+2]] for j in range(4)] + [[l] for l in wr]
            if ks+4 < 18: dm = dma_w(ks+4) + dma_a(ks+4)
            if ks == 4 and J == 8:
                dm = dm + [[f"s_mov_b64 exec, s[{t0}:{t0+1}]", f"buffer_atomic_add v1, v2, {WS}, s{sCntp} offen", "s_mov_b64 exec, -1"]]
            if ks == 15:
                rd_ = rd_ + [[f"s_mov_b64 exec, s[{t0}:{t0+1}]", f"ds_write_b32 v11, v{vTk}", "s_mov_b64 exec, -1"]]
            if ks == 16:
                rd_ = rd_ + [[f"ds_read_b32 v{vTk}, v11"]]
            n = 0
            for i in range(8):
                for j in range(J):
                    W_, A_ = vr(F+32+4*i), vr(F+4*j)
                    s0, s1 = (A_, W_) if actA else (W_, A_)
                    a(f"v_mfma_f32_16x16x32_bf16 {acc(i,j)}, {s0}, {s1}, {'0' if ks==0 else acc(i,j)}")
                    if dm and (n % 7 == 3 if J == 8 else n % 4 == 3):
                        for l in dm.pop(0): a(l)
                    elif rd_ and (n % 2 == 0 or J < 8):
                        for l in rd_.pop(0): a(l)
                    n += 1
            assert not rd_ and not dm, (ks, len(rd_), len(dm))
        tacc(a,3)
        if G1T['on']: a("s_memtime s[6:7]\ns_waitcnt lgkmcnt(0)\ns_sub_u32 s6, s6, s97\ns_add_u32 s95, s95, s6")
    T = 32
    def rd(dst, i, j):
        for r in range(4): a(f"v_accvgpr_read_b32 v{dst+r}, a{4*(8*i+j)+r}")
    def epi_kq(J=8):
        n = 0
        for j in range(J):
            for wq in range(4):
                b = T + 12*(n%4); n += 1
                rd(b, 2*wq, j); rd(b+4, 2*wq+1, j)
                if wq % 2 == 0: a(f"s_add_u32 s{sTmp}, s{sOutc}, {(j>>1)*0x40000 + (wq>>1)*4096}")
                for r in range(4): a(f"v_cvt_pk_bf16_f32 v{b+8+r}, v{b+2*r}, v{b+2*r+1}")
                a(f"buffer_store_dwordx4 {vr(b+8)}, v{vL16}, {WS}, s{sTmp} offen offset:{(wq&1)*2048 + (j&1)*1024} sc1")
    def epi_v(J=8):
        n = 0
        for sg in range(J//2):
            for i in range(8):
                b = T + 12*(n%4); n += 1
                rd(b, i, 2*sg); rd(b+4, i, 2*sg+1)
                if i % 4 == 0: a(f"s_add_u32 s{sTmp}, s{sOutc}, {sg*0x40000 + (i>>2)*4096}")
                for r in range(4): a(f"v_cvt_pk_bf16_f32 v{b+8+r}, v{b+2*r}, v{b+2*r+1}")
                a(f"buffer_store_dwordx4 {vr(b+8)}, v{vL16}, {WS}, s{sTmp} offen offset:{(i&3)*1024} sc1")
    def epi_gu():
        k0 = -2.0*0.7978845608028654*1.4426950408889634
        a(f"v_mov_b32 v100, {f2u(k0):#x}\nv_mov_b32 v101, v100\nv_mov_b32 v98, {f2u(k0*0.044715):#x}\nv_mov_b32 v99, v98\nv_mov_b32 v96, 1.0\nv_mov_b32 v97, 1.0")
        n = 0
        for j in range(8):
            a(f"s_add_u32 s{sTmp}, s{sOutc}, {j*144*1024}")
            for p in range(2):
                b = T + 32*(n%2); n += 1
                G, U, Z_, O_ = b, b+8, b+16, b+24
                rd(G, 2*p, j); rd(G+4, 2*p+1, j); rd(U, 4+2*p, j); rd(U+4, 5+2*p, j)
                for r in range(0,8,2): a(f"v_pk_mul_f32 {vr(Z_+r,2)}, {vr(G+r,2)}, {vr(G+r,2)}")
                for r in range(0,8,2): a(f"v_pk_fma_f32 {vr(Z_+r,2)}, {vr(Z_+r,2)}, v[98:99], v[100:101]")
                for r in range(0,8,2): a(f"v_pk_mul_f32 {vr(Z_+r,2)}, {vr(Z_+r,2)}, {vr(G+r,2)}")
                for r in range(8): a(f"v_exp_f32 v{Z_+r}, v{Z_+r}")
                for r in range(0,8,2): a(f"v_pk_mul_f32 {vr(G+r,2)}, {vr(G+r,2)}, {vr(U+r,2)}")
                for r in range(0,8,2): a(f"v_pk_add_f32 {vr(Z_+r,2)}, {vr(Z_+r,2)}, v[96:97]")
                for r in range(8): a(f"v_rcp_f32 v{Z_+r}, v{Z_+r}")
                a("s_nop 0")
                for r in range(0,8,2): a(f"v_pk_mul_f32 {vr(G+r,2)}, {vr(G+r,2)}, {vr(Z_+r,2)}")
                for r in range(4): a(f"v_cvt_pk_bf16_f32 v{O_+r}, v{G+2*r}, v{G+2*r+1}")
                a(f"buffer_store_dwordx4 {vr(O_)}, v{vL16}, {WS}, s{sTmp} offen offset:{p*1024} sc1")
    a(f"""
    v_and_b32 v11, 63, v0
    v_lshlrev_b32 v{vL16}, 4, v11
    v_lshrrev_b32 v12, 4, v11             ; g
    v_bfe_u32 v13, v11, 2, 2              ; r
    v_and_b32 v14, 3, v11                 ; c
    v_lshl_add_u32 v15, v12, 3, v13
    v_lshlrev_b32 v15, 8, v15
    v_lshl_add_u32 v15, v14, 3, v15
    v_and_b32 v12, 1, v12
    v_lshl_add_u32 v13, v12, 2, v13
    v_lshl_add_u32 v10, v13, 5, v15
    s_lshr_b32 s{t0}, s{sW}, 1
    s_lshl_b32 s{sTmp}, s{t0}, 13
    v_add_u32 v{vRa}, s{sTmp}, v{vL16}
    s_lshl_b32 s{sM0a}, s{sW}, 12
    s_and_b32 s{t1}, s{sW}, 1
    s_lshl_b32 s{sM0w}, s{t1}, 11
    s_add_u32 s{sM0w}, s{sM0w}, s{sTmp}
    s_add_u32 s{sM0w}, s{sM0w}, 16384
    s_mov_b32 s{sLNOK}, 0
    """)
    a.label("Lg1_fresh")
    remap(t2)
    a.label("Lg1_fresh2")
    a(f"s_cmp_lt_u32 s{t2}, 96\ns_cbranch_scc1 Lg1_first")
    steal(a, DB_G1Q, None, "g1", t3)
    a(f"""
    s_cmp_eq_u32 s{t3}, 0
    s_cbranch_scc1 Lg1_done
    s_ff1_i32_b32 s{sQ}, s{t3}
    s_lshl_b32 s{sTmp}, s{sQ}, 2
    """)
    wg_atomic(a, DB_G1Q, t2, "g1q", soff=f"s{sTmp}")
    a("s_branch Lg1_fresh")
    a.label("Lg1_first")
    tacc(a,0)
    decode_and_start("a")
    a(f"s_waitcnt vmcnt(0)\ns_mov_b32 s{sCntp}, 0x40000000")
    tacc(a,1)
    a.label("Lg1_task")
    a(f"""
    s_mov_b32 s{sKINDc}, s{sKIND}
    s_mov_b32 s{sOutc}, s{sOutO}
    s_mov_b32 s{sCntc}, s{sCnt}
    s_cmp_eq_u32 s{sW}, 0
    s_cselect_b64 s[{t0}:{t0+1}], 1, 0
    v_mov_b32 v1, 1
    v_mov_b32 v2, 0
    v_mov_b32 v{vTk}, 1
    v_mov_b32 v11, 0x20000
    s_lshl_b32 s{sTmp}, s{sQ}, 2
    s_mov_b64 exec, s[{t0}:{t0+1}]
    buffer_atomic_add v{vTk}, v2, {DBG}, s{sTmp} offen offset:{DB_G1Q} sc0
    s_mov_b64 exec, -1
    s_cmp_lt_u32 s{sHN}, 2
    s_cbranch_scc1 Lg1_x
    s_cmp_eq_u32 s{sKINDc}, 1
    s_cbranch_scc1 Lg1_vloop
    """)
    mainloop(False, "n")
    a("s_branch Lg1_next")
    a.label("Lg1_vloop")
    mainloop(True, "v")
    a.label("Lg1_next")
    a(f"""
    v_readfirstlane_b32 s{sNext}, v{vTk}
    s_barrier
    """)
    remap(sNext)
    a(f"""
    s_cmp_lt_u32 s{sNext}, 96
    s_cbranch_scc0 Lg1_epi
    s_mov_b32 s{t2}, s{sNext}
    """)
    decode_and_start("b")
    a.label("Lg1_epi")
    a(f"""
    s_cmp_eq_u32 s{sKINDc}, 1
    s_cbranch_scc1 Lg1_ev
    s_cmp_eq_u32 s{sKINDc}, 3
    s_cbranch_scc1 Lg1_egu
    """)
    epi_kq()
    a("s_branch Lg1_eend")
    a.label("Lg1_ev")
    epi_v()
    a("s_branch Lg1_eend")
    a.label("Lg1_egu")
    epi_gu()
    a.label("Lg1_eend")
    tacc(a,4)
    a(f"""
    s_mov_b32 s{sCntp}, s{sCntc}
    s_cmp_lt_u32 s{sNext}, 96
    s_cbranch_scc1 Lg1_task
Lg1_now:
    """)
    signal(a, sCntp, "g1")
    tacc(a,5)
    if G1T['on']:
        a(f"""
        s_cmp_lg_u32 s{sCntc}, {WS_FLAGS+FL_KV}
        s_cbranch_scc1 Lg1_norec
        v_mov_b32 v20, s101
        v_mov_b32 v21, s94
        v_mov_b32 v22, s89
        v_mov_b32 v23, s90
        v_mov_b32 v24, s91
        v_mov_b32 v25, s92
        v_mov_b32 v26, s93
        v_mov_b32 v27, 77
        s_lshl_b32 s{t0}, s2, 5
        s_add_u32 s{t0}, s{t0}, {WS_STAMP+0x1a000}
        v_mov_b32 v14, 0
        s_mov_b64 exec, 1
        buffer_store_dwordx4 v[20:23], v14, {WS}, s{t0} offen
        buffer_store_dwordx4 v[24:27], v14, {WS}, s{t0} offen offset:16
        s_mov_b64 exec, -1
Lg1_norec:
        """)
    a(f"""
    s_mov_b32 s{t2}, s{sNext}
    s_branch Lg1_fresh2
    """)
    a.label("Lg1_x")
    signal(a, sCntp, "g1xp")
    a(f"""
    s_mov_b32 s{sHalf}, s{sHN}
    s_lshr_b32 s{sTmp}, s{sW}, 1
    s_lshl_b32 s{sTmp}, s{sTmp}, 12
    s_lshl_b32 s{t2}, s{sHalf}, 13
    s_add_u32 s{sTmp}, s{sTmp}, s{t2}
    v_add_u32 v{vRa}, s{sTmp}, v{vL16}
    s_lshl_b32 s{sTmp}, s{sTmp}, 7
    s_and_b32 s{sOutc}, s{sOutc}, 0xff0fffff
    s_add_u32 s{sOutc}, s{sOutc}, s{sTmp}
    s_cmp_eq_u32 s{sHalf}, 0
    s_cselect_b32 s{sCntp}, {WS_FLAGS+FL_EXP}, s{sCntc}
    s_cmp_eq_u32 s{sKINDc}, 1
    s_cbranch_scc1 Lg1_xv
    """)
    mainloop(False, "xn", 4)
    a("s_nop 7")
    epi_kq(4)
    a("s_branch Lg1_xe")
    a.label("Lg1_xv")
    mainloop(True, "xv", 4)
    a("s_nop 7")
    epi_v(4)
    a.label("Lg1_xe")
    signal(a, sCntp, "g1x")
    if G1T['on']:
        a(f"""
        s_memrealtime s[98:99]
        s_waitcnt lgkmcnt(0)
        v_mov_b32 v20, s98
        v_mov_b32 v21, s91
        v_mov_b32 v22, s98
        v_mov_b32 v23, s91
        s_lshl_b32 s{t2}, s2, 5
        s_add_u32 s{t2}, s{t2}, {WS_STAMP+0x1c000}
        v_mov_b32 v14, 0
        s_mov_b64 exec, 1
        buffer_store_dwordx4 v[20:23], v14, {WS}, s{t2} offen
        s_mov_b64 exec, -1
        """)
    a(f"""
    v_readfirstlane_b32 s{t2}, v{vTk}
    s_lshr_b32 s{sTmp}, s{sW}, 1
    s_lshl_b32 s{sTmp}, s{sTmp}, 13
    v_add_u32 v{vRa}, s{sTmp}, v{vL16}
    s_branch Lg1_fresh
    """)
    a.label("Lg1_done")

TIM = {'on':False}
def ts(a, i):
    if TIM['on']: a(f's_memrealtime s[{88+2*i}:{89+2*i}]')

def p23_role(a):
    sG, sSL, sSEG, sTmp, sSrc, sI, sHd, sQT, sPar, sT2, sC = 72,73,74,75,76,77,78,79,80,81,82
    vL16, vD, vTr, vOut, vRed = 3,4,5,6,7
    GR = 8
    ACC = 20
    BUF = 64
    a(f"""
    s_mul_hi_u32 s{sG}, s{t0}, {(2**32+17)//18}
    s_mul_i32 s{sTmp}, s{sG}, 18
    s_sub_u32 s{sSL}, s{t0}, s{sTmp}
    v_and_b32 v11, 63, v0
    v_lshlrev_b32 v{vL16}, 4, v11
    v_lshrrev_b32 v12, 2, v11
    v_mul_u32_u24 v12, 1152, v12
    v_and_b32 v13, 3, v11
    v_lshl_add_u32 v{vD}, v13, 4, v12
    v_lshrrev_b32 v12, 2, v11
    v_lshlrev_b32 v12, 6, v12
    v_lshl_add_u32 v12, v13, 3, v12
    s_mul_i32 s{sTmp}, s{sW}, 40960
    v_add_u32 v{vTr}, s{sTmp}, v12
    v_and_b32 v12, 15, v11
    s_and_b32 s{sTmp}, s{sW}, 1
    s_lshl_b32 s{sTmp}, s{sTmp}, 4
    v_add_u32 v12, s{sTmp}, v12
    v_mul_u32_u24 v12, 1152, v12
    v_lshrrev_b32 v13, 4, v11
    v_lshl_add_u32 v12, v13, 3, v12
    s_lshl_b32 s{sTmp}, s{sSL}, 6
    s_lshr_b32 s{sT2}, s{sW}, 1
    s_lshl_b32 s{sT2}, s{sT2}, 5
    s_add_u32 s{sTmp}, s{sTmp}, s{sT2}
    v_add_u32 v{vOut}, s{sTmp}, v12
    s_mov_b32 s{sPar}, 0
    """)
    wreg = lambda ks,nt: (f"a[{8*ks+4*nt}:{8*ks+4*nt+3}]" if ks < 32 else vr(224+8*(ks-32)+4*nt))
    def load_slice(S, nk):
        a(f"""
        s_barrier
        s_mul_i32 s{sSrc}, s{sW}, {32*nk*1152}
        s_lshl_b32 s{sTmp}, s{sSL}, 6
        s_add_u32 s{sSrc}, s{sSrc}, s{sTmp}
        s_mul_i32 s{sT2}, s{sW}, 40960
        """)
        vm = Q(a,"vmcnt",63)
        def issue(ks):
            for hf in range(2):
                a(f"s_add_u32 m0, s{sT2}, {(ks%16)*2048 + hf*1024}")
                a(f"s_add_u32 s{sTmp}, s{sSrc}, {(ks*32+hf*16)*1152}")
                a(f"buffer_load_dwordx4 v{vD}, {srd(S)}, s{sTmp} offen lds"); vm.add(ks)
        for ks in range(16): issue(ks)
        for ks in range(nk):
            vm.wait(ks)
            for nt in range(2):
                for jj in range(2):
                    w_ = wreg(ks,nt); k_=w_[0]; b=int(w_[2:w_.index(":")])
                    a(f"ds_read_b64_tr_b16 {k_}[{b+2*jj}:{b+2*jj+1}], v{vTr} offset:{(ks%16)*2048 + jj*1024 + nt*32}")
            if ks+16 < nk:
                a("s_waitcnt lgkmcnt(0)"); issue(ks+16)
        a("s_waitcnt lgkmcnt(0)\ns_barrier")
    def gemm(nk, NK, tag):
        a(f"""
        s_mul_i32 s{sTmp}, s{sW}, {nk*1024}
        s_add_u32 s{sSrc}, s{sSrc}, s{sTmp}
        s_add_u32 s{sT2}, s{sSrc}, {NK*1024}
        """)
        vm = Q(a,"vmcnt",63)
        def issue(ks):
            if ks and ks % 4 == 0:
                a(f"s_add_u32 s{sSrc}, s{sSrc}, 4096\ns_add_u32 s{sT2}, s{sT2}, 4096")
            for tt in range(2):
                a(f"buffer_load_dwordx4 {vr(BUF+8*(ks%16)+4*tt)}, v{vL16}, {WS}, s{(sSrc,sT2)[tt]} offen offset:{(ks%4)*1024} sc1"); vm.add(ks)
        for ks in range(16): issue(ks)
        for ks in range(nk):
            vm.wait(ks)
            for nt in range(2):
                for tt in range(2):
                    d = vr(ACC+4*(2*nt+tt))
                    a(f"v_mfma_f32_16x16x32_bf16 {d}, {wreg(ks,nt)}, {vr(BUF+8*(ks%16)+4*tt)}, {'0' if ks==0 else d}")
            if ks+16 < nk: issue(ks+16)
        a(f"""
        s_lshl_b32 s{sTmp}, s{sW}, 12
        s_add_u32 s{sTmp}, s{sTmp}, s{sPar}
        v_add_u32 v{vRed}, s{sTmp}, v{vL16}
        s_nop 4
        """)
        for q in range(4): a(f"ds_write_b128 v{vRed}, {vr(ACC+4*q)} offset:{q*1024}")
        a(f"""
        s_lshl_b32 s{sTmp}, s{sW}, 10
        s_add_u32 s{sTmp}, s{sTmp}, s{sPar}
        v_add_u32 v{vRed}, s{sTmp}, v{vL16}
        s_xor_b32 s{sPar}, s{sPar}, 16384
        s_waitcnt lgkmcnt(0)
        s_barrier
        """)
        for q in range(4): a(f"ds_read_b128 {vr(ACC+4*q)}, v{vRed} offset:{q*4096}")
        a("s_waitcnt lgkmcnt(0)")
        for r in range(4):
            a(f"v_add_f32 v{ACC+r}, v{ACC+r}, v{ACC+4+r}")
            a(f"v_add_f32 v{ACC+8+r}, v{ACC+8+r}, v{ACC+12+r}")
        for r in range(4): a(f"v_add_f32 v{ACC+r}, v{ACC+r}, v{ACC+8+r}")
        a(f"v_cvt_pk_bf16_f32 v{ACC+4}, v{ACC}, v{ACC+1}\nv_cvt_pk_bf16_f32 v{ACC+5}, v{ACC+2}, v{ACC+3}")
        for r in range(2):
            a(f"v_lshlrev_b32 v{ACC+2*r}, 16, v{ACC+4+r}\nv_and_b32 v{ACC+2*r+1}, 0xffff0000, v{ACC+4+r}")
    ts(a,0)
    load_slice(S_WD, 36)
    a(f"s_mov_b32 s{sSEG}, s{sG}\ns_mov_b32 s{sI}, 0")
    a.label("Lp2_loop")
    a(f"s_lshr_b32 s{sTmp}, s{sSEG}, 3\ns_lshl_b32 s{sTmp}, s{sTmp}, 7\ns_add_u32 s{sT2}, s{sTmp}, {WS_FLAGS+FL_H}")
    wait_ge_wg(a, WS, f"s{sT2}", 36, "p2h")
    a(f"s_mul_i32 s{sSrc}, s{sSEG}, {2*144*1024}\ns_add_u32 s{sSrc}, s{sSrc}, {WS_H}")
    gemm(36, 144, "p2")
    for r in range(4): a(f"v_mul_f32 v{ACC+4+r}, {f2u(-1.4426950408889634):#x}, v{ACC+r}")
    for r in range(4): a(f"v_exp_f32 v{ACC+4+r}, v{ACC+4+r}")
    for r in range(4): a(f"v_add_f32 v{ACC+4+r}, 1.0, v{ACC+4+r}")
    for r in range(4): a(f"v_rcp_f32 v{ACC+4+r}, v{ACC+4+r}")
    for r in range(4): a(f"v_mul_f32 v{ACC+r}, v{ACC+r}, v{ACC+4+r}")
    a(f"v_cvt_pk_bf16_f32 v{ACC+4}, v{ACC}, v{ACC+1}\nv_cvt_pk_bf16_f32 v{ACC+5}, v{ACC+2}, v{ACC+3}")
    for r in range(0,10,2): a(f"v_mov_b64 {vr(GR+r,2)}, {vr(GR+r+2,2)}")
    a(f"v_mov_b64 {vr(GR+10,2)}, {vr(ACC+4,2)}")
    a(f"""
    s_add_u32 s{sSEG}, s{sSEG}, 12
    s_add_u32 s{sI}, s{sI}, 1
    s_cmp_lt_u32 s{sSEG}, 64
    s_cbranch_scc1 Lp2_loop
    s_cmp_eq_u32 s{sI}, 6
    s_cbranch_scc1 Lp2_done
    """)
    for r in range(0,10,2): a(f"v_mov_b64 {vr(GR+r,2)}, {vr(GR+r+2,2)}")
    a.label("Lp2_done")
    ts(a,1)
    load_slice(S_WO, 32)
    a(f"""
    v_and_b32 v36, 31, v0
    v_min_u32 v36, 16, v36
    v_lshlrev_b32 v37, 7, v36
    v_cmp_gt_u32 vcc, 9, v36
    v_mov_b32 v38, 16
    v_mov_b32 v39, 32
    v_cndmask_b32 v38, v38, v39, vcc
    s_mov_b32 s{sTmp}, {WS_FLAGS+FL_EXP}
    s_mov_b32 s{t7}, 0x800000
Lp3_w1:
    buffer_load_dword v39, v37, {WS}, s{sTmp} offen sc1
    s_sub_u32 s{t7}, s{t7}, 1
    s_cbranch_scc1 Lp3_w1d
    s_waitcnt vmcnt(0)
    v_cmp_gt_u32 vcc, v38, v39
    s_cbranch_vccz Lp3_w1d
    s_sleep 4
    s_branch Lp3_w1
Lp3_w1d:
    v_and_b32 v37, 31, v0
Lp3_w2:
    buffer_load_ubyte v39, v37, {DBG}, 0 offen offset:{DB_TAB} sc1
    s_sub_u32 s{t7}, s{t7}, 1
    s_cbranch_scc1 Lp3_w2d
    s_waitcnt vmcnt(0)
    v_cmp_eq_u32 vcc, 0, v39
    s_cbranch_vccz Lp3_w2d
    s_sleep 4
    s_branch Lp3_w2
Lp3_w2d:
    s_waitcnt vmcnt(0)
    s_lshl_b32 s{sTmp}, s{sSL}, 2
    s_add_u32 s{sTmp}, s{sTmp}, s{sW}
    s_lshr_b32 s{sHd}, s{sTmp}, 1
    s_and_b32 s{sQT}, s{sTmp}, 1
    s_mov_b32 s{sC}, {f2u(128**-0.5 * 1.4426950408889634):#x}
    s_mov_b32 s{sSEG}, s{sG}
    """)
    ts(a,2)
    a.label("Lp3_loop")
    XR = 36
    a(f"s_mul_i32 s{sTmp}, s{sSEG}, {32*1152}")
    a(f"buffer_load_dwordx2 {vr(XR,2)}, v{vOut}, {srd(S_X)}, s{sTmp} offen")
    a(f"s_cmp_ge_u32 s{sHd}, 32\ns_cbranch_scc1 Lp3_noattn")
    QF, KF, VF, KM, VM = 64, 80, 112, 144, 160
    SX0, SX1, SM, PB, PM, OT = 40, 44, 48, 52, 56, 176
    a(f"""
    s_lshl_b32 s{sSrc}, s{sSEG}, 18
    s_lshl_b32 s{sTmp}, s{sHd}, 13
    s_add_u32 s{sSrc}, s{sSrc}, s{sTmp}
    s_lshl_b32 s{sT2}, s{sQT}, 10
    s_add_u32 s{sT2}, s{sT2}, s{sSrc}
    """)
    for hf in range(2):
        a(f"s_add_u32 s{sTmp}, s{sT2}, {WS_QX + hf*4096}")
        for i in range(2): a(f"buffer_load_dwordx4 {vr(QF+8*hf+4*i)}, v{vL16}, {WS}, s{sTmp} offen offset:{i*2048} sc1")
    for base,R in ((WS_KX,KF),(WS_VX,VF)):
        for hf in range(2):
            a(f"s_add_u32 s{sTmp}, s{sSrc}, {base + hf*4096}")
            for i in range(4): a(f"buffer_load_dwordx4 {vr(R+16*hf+4*i)}, v{vL16}, {WS}, s{sTmp} offen offset:{i*1024} sc1")
    a("s_waitcnt vmcnt(8)")
    for wq in range(4):
        for kt,S_ in ((0,SX0),(1,SX1)):
            a(f"v_mfma_f32_16x16x32_bf16 {vr(S_)}, {vr(KF+8*wq+4*kt)}, {vr(QF+4*wq)}, {'0' if wq==0 else vr(S_)}")
    a(f"""
    v_and_b32 v62, 63, v0
    v_lshrrev_b32 v38, 4, v62
    v_lshlrev_b32 v38, 2, v38
    v_and_b32 v39, 15, v62
    v_sub_u32 v38, v38, v39
    s_lshl_b32 s{sTmp}, s{sQT}, 4
    v_subrev_u32 v38, s{sTmp}, v38
    v_mov_b32 v39, 0xf149f2ca
    s_lshl_b32 s{sTmp}, s{sHd}, 7
    s_add_u32 s{sT2}, s{sTmp}, {WS_FLAGS+FL_KVM}
    s_add_u32 s{sI}, s{sSEG}, 1
    """)
    for kt,S_ in ((0,SX0),(1,SX1)):
        for r in range(4):
            a(f"v_cmp_ge_i32 vcc, {-(16*kt+r)}, v38" if 16*kt+r <= 16 else f"v_cmp_ge_i32 vcc, {(-(16*kt+r)) & 0xffffffff:#x}, v38")
            a("s_nop 1")
            a(f"v_cndmask_b32 v{S_+r}, v39, v{S_+r}, vcc")
    wait_ge(a, WS, f"s{sT2}", f"s{sI}", "p3kvm", sleep=2)
    ts(a,3)
    a(f"""
    s_lshr_b32 s{sTmp}, s{sSrc}, 1
    s_add_u32 s{sT2}, s{sTmp}, {WS_KM}
    s_lshr_b32 s{sTmp}, s{sSrc}, 2
    s_add_u32 s{sTmp}, s{sTmp}, {WS_VM}
    v_lshrrev_b32 v38, 1, v{vL16}
    """)
    for i in range(4): a(f"buffer_load_dwordx4 {vr(KM+4*i)}, v{vL16}, {WS}, s{sT2} offen offset:{i*1024} sc1")
    for i in range(4): a(f"buffer_load_dwordx2 {vr(VM+2*i,2)}, v38, {WS}, s{sTmp} offen offset:{i*512} sc1")
    a(f"v_mov_b64 {vr(VM+8,2)}, 0")
    a(f"v_max3_f32 v60, v{SX0}, v{SX0+1}, v{SX0+2}\nv_max3_f32 v60, v60, v{SX0+3}, v{SX1}\nv_max3_f32 v60, v60, v{SX1+1}, v{SX1+2}\nv_max_f32 v60, v60, v{SX1+3}")
    for wq in range(4):
        a(f"s_waitcnt vmcnt({7-wq})")
        a(f"v_mfma_f32_16x16x32_bf16 {vr(SM)}, {vr(KM+4*wq)}, {vr(QF+4*wq)}, {'0' if wq==0 else vr(SM)}")
    a(f"s_nop 7\nv_max3_f32 v60, v60, v{SM}, v{SM+1}")
    def xred(op):
        for sw in ("16","32"):
            a(f"v_mov_b32 v61, v60\ns_nop 1\nv_permlane{sw}_swap_b32 v60, v61\n{op} v60, v60, v61")
    xred("v_max_f32")
    a(f"v_mul_f32 v60, s{sC}, v60")
    vals = [SX0+r for r in range(4)] + [SX1+r for r in range(4)] + [SM, SM+1]
    for r in vals: a(f"v_fma_f32 v{r}, v{r}, s{sC}, -v60")
    for r in vals: a(f"v_exp_f32 v{r}, v{r}")
    a(f"s_nop 0\nv_add_f32 v60, v{vals[0]}, v{vals[1]}")
    for r in vals[2:]: a(f"v_add_f32 v60, v60, v{r}")
    xred("v_add_f32")
    a("v_rcp_f32 v60, v60\ns_nop 0")
    for r in vals: a(f"v_mul_f32 v{r}, v{r}, v60")
    for r in range(4): a(f"v_cvt_pk_bf16_f32 v{PB+r}, v{SX0+2*r}, v{SX0+2*r+1}")
    a(f"v_mov_b64 {vr(PM+2,2)}, 0\nv_mov_b64 {vr(SX0+2,2)}, 0\nv_mov_b32 v{PM}, 0\nv_mov_b32 v{SX0+1}, 0")
    a(f"v_cvt_pk_bf16_f32 v{PM+1}, v{SM}, v{SM+1}\nv_cvt_pk_bf16_f32 v{SX0}, v{SM}, v{SM+1}")
    a("s_waitcnt vmcnt(0)")
    for et in range(8):
        a(f"v_mfma_f32_16x16x32_bf16 {vr(OT+4*et)}, {vr(VF+4*et)}, {vr(PB)}, 0")
    for et in range(8):
        a(f"v_mfma_f32_16x16x32_bf16 {vr(OT+4*et)}, {vr(VM+2*(et>>1))}, {vr(PM if et&1 else SX0)}, {vr(OT+4*et)}")
    a(f"""
    s_lshl_b32 s{sTmp}, s{sSEG}, 1
    s_add_u32 s{sTmp}, s{sTmp}, s{sQT}
    s_lshl_b32 s{sTmp}, s{sTmp}, 17
    s_lshl_b32 s{sT2}, s{sHd}, 12
    s_add_u32 s{sTmp}, s{sTmp}, s{sT2}
    s_add_u32 s{sTmp}, s{sTmp}, {WS_O}
    """)
    for wq in range(4):
        for r in range(4): a(f"v_cvt_pk_bf16_f32 v{QF+4*wq+r}, v{OT+8*wq+2*r}, v{OT+8*wq+2*r+1}")
        a(f"buffer_store_dwordx4 {vr(QF+4*wq)}, v{vL16}, {WS}, s{sTmp} offen offset:{wq*1024} sc1")
    a.label("Lp3_noattn")
    a(f"s_lshl_b32 s{sT2}, s{sSEG}, 7\ns_add_u32 s{sT2}, s{sT2}, {WS_FLAGS+FL_O}")
    signal(a, sT2, "p3o")
    ts(a,4)
    wait_ge_wg(a, WS, f"s{sT2}", 18, "p3o", sleep=1)
    ts(a,5)
    a(f"s_lshl_b32 s{sSrc}, s{sSEG}, 18\ns_add_u32 s{sSrc}, s{sSrc}, {WS_O}")
    gemm(32, 128, "p3")
    for r in range(2):
        a(f"v_lshlrev_b32 v{ACC+4+2*r}, 16, v{GR+r}\nv_and_b32 v{ACC+5+2*r}, 0xffff0000, v{GR+r}")
        a(f"v_lshlrev_b32 v{ACC+8+2*r}, 16, v{XR+r}\nv_and_b32 v{ACC+9+2*r}, 0xffff0000, v{XR+r}")
    for r in range(4): a(f"v_mul_f32 v{ACC+r}, v{ACC+r}, v{ACC+4+r}")
    a(f"v_cvt_pk_bf16_f32 v{ACC+4}, v{ACC}, v{ACC+1}\nv_cvt_pk_bf16_f32 v{ACC+5}, v{ACC+2}, v{ACC+3}")
    for r in range(2):
        a(f"v_lshlrev_b32 v{ACC+2*r}, 16, v{ACC+4+r}\nv_and_b32 v{ACC+2*r+1}, 0xffff0000, v{ACC+4+r}")
    for r in range(4): a(f"v_add_f32 v{ACC+r}, v{ACC+r}, v{ACC+8+r}")
    a(f"v_cvt_pk_bf16_f32 v{ACC+4}, v{ACC}, v{ACC+1}\nv_cvt_pk_bf16_f32 v{ACC+5}, v{ACC+2}, v{ACC+3}")
    a(f"s_mul_i32 s{sTmp}, s{sSEG}, {32*1152}")
    a(f"buffer_store_dwordx2 {vr(ACC+4,2)}, v{vOut}, {srd(S_OUT)}, s{sTmp} offen")
    for r in range(0,10,2): a(f"v_mov_b64 {vr(GR+r,2)}, {vr(GR+r+2,2)}")
    a(f"""
    s_add_u32 s{sSEG}, s{sSEG}, 12
    s_cmp_lt_u32 s{sSEG}, 64
    s_cbranch_scc1 Lp3_loop
    """)
```

```python
from emit import *
from layout import *
import struct as _s

class Q:
    def __init__(s, a, name, mx): s.a=a; s.name=name; s.mx=mx; s.q=[]
    def add(s, tag): s.q.append(tag)
    def wait(s, tag):
        if tag not in s.q: return
        i = max(k for k,t in enumerate(s.q) if t==tag)
        n = len(s.q)-1-i
        n = min(n, s.mx)
        s.a(f"s_waitcnt {s.name}({n})")
        s.q = s.q[len(s.q)-n:] if n>0 else []
    def drain(s):
        s.a(f"s_waitcnt {s.name}(0)"); s.q=[]
    def clear(s): s.q=[]

def vr(b, n=4): return f"v[{b}:{b+n-1}]" if n>1 else f"v{b}"
def f2u(x): return _s.unpack("<I", _s.pack("<f", x))[0]

S_WS, S_WQ, S_WK, S_WV, S_WO, S_M0, S_DBG = 8,12,16,20,24,28,32
def srd(b): return f"s[{b}:{b+3}]"
sW, sH, sXCC, sSTEP = 60,61,62,63
sMEMR, sMEMW, sMEMA, sPARTW, sPARTX = 64,65,66,67,68
sTAG = 59
sKX, sVX, sKM, sVM, sRED, sBUD, sT0, sT1, sT2, sHC = 69,70,71,72,73,74,75,76,77,78
sFLG = 79
M_H0 = 80
sSW, sSMW, sOW, sC = 84, 85, 86, 87
sT3, sRM, sT4, sT5 = 88, 83, 82, 89
sL0 = 98
sFm, sKVR, sPF = 94, 91, 58
sSTO = 90
MH0 = f"s[{M_H0}:{M_H0+1}]"
vA,vIdx,vR0,vR1,vW,vP,vF0,vRs,vF1,vQ = 0,1,2,3,4,5,6,7,8,9
vRl = vP
vAp = vA
vS, vT = 10, 11
AQ0,AQ1,AK0,AK1 = 12,16,20,24
A0,A1,A2,A3 = 28,32,36,40
L = 44
KX, VX, SEL = 60, 68, 76
X_OFF, SEL_OFF, SM_OFF, RSEL_OFF, SX_OFF, RES_OFF = 0, 9216, 10240, 11264, 12288, 16384

def frag_regs():
    pool = [f"a[{8*i}:{8*i+7}]" for i in range(32)] + [f"v[{80+8*i}:{80+8*i+7}]" for i in range(22)]
    names = []
    for p in range(8): names += [("q",p,0),("q",p,1)]
    for p in (0,2,4,6,8): names += [("k",p,0),("k",p,1)]
    for p in range(2,9): names += [("v",p,0),("v",p,1)]
    for c in range(7): names += [("o",c,0),("o",c,1)]
    assert len(names)==54
    return dict(zip(names,pool))
FR = frag_regs()
def sub(reg, off, n):
    k=reg[0]; b=int(reg[2:reg.index(":")]); return f"{k}[{b+off}:{b+off+n-1}]"

CHUNKS = [("q",i) for i in range(8)] + [("k",i) for i in (0,2,4,6,8)] + [("v",i) for i in range(2,9)] + [("o",i) for i in range(7)] \
       + [("q",8),("v",0),("v",1),("k",1),("k",3),("k",5),("k",7),("o",7),("o",8)]
assert len(CHUNKS)==36
SLOT_Q8, SLOT_V0, SLOT_O7, SLOT_O8 = 0,1,7,8

def rec_setup(a):
    a(f"""
    v_lshrrev_b32 v11, 4, v{vA}           ; lane
    s_mov_b32 s{M_H0}, 0x33333333
    s_mov_b32 s{M_H0+1}, 0x33333333
    v_mov_b32 v12, 0xeeee
    v_mov_b32 v13, 0x4444
    v_cndmask_b32 v{vIdx}, v12, v13, {MH0}
    s_lshl_b32 s{sT0}, s{sW}, 12
    s_add_u32 s{sT0}, s{sT0}, {RES_OFF}
    v_add_u32 v{vR0}, s{sT0}, v{vA}
    s_lshl_b32 s{sT0}, s{sW}, 14
    s_add_u32 s{sT0}, s{sT0}, {65536-RES_OFF}
    v_add_u32 v{vR1}, s{sT0}, v{vR0}
    v_bfe_u32 v12, v11, 2, 2
    v_and_b32 v13, 1, v11
    v_lshl_add_u32 v14, v12, 1, v13
    s_lshl_b32 s{sT0}, s{sW}, 11
    v_add_u32 v{vW}, s{sT0}, v{vA}
    s_lshl_b32 s{sT0}, s{sW}, 8
    s_add_u32 s{sT0}, s{sT0}, 8192
    v_lshlrev_b32 v12, 2, v11
    v_add_u32 v{vQ}, s{sT0}, v12
    v_and_b32 v12, 31, v11
    v_lshlrev_b32 v12, 6, v12
    v_lshrrev_b32 v13, 5, v11
    v_lshl_add_u32 v{vF0}, v13, 24, v12
    v_bfe_u32 v12, v11, 3, 1
    v_lshrrev_b32 v13, 4, v11
    v_lshl_add_u32 v12, v12, 4, v13
    v_mul_u32_u24 v12, 9216, v12
    v_and_b32 v13, 7, v11
    v_lshl_add_u32 v{vRl}, v13, 4, v12
    v_bfe_u32 v12, v11, 1, 2
    v_lshlrev_b32 v12, 5, v12
    v_and_b32 v13, 1, v11
    v_lshl_add_u32 v12, v13, 3, v12
    v_bfe_u32 v13, v11, 5, 1
    v_lshl_add_u32 v12, v13, 4, v12
    v_bfe_u32 v13, v11, 4, 1
    v_lshl_add_u32 v12, v13, 2, v12
    v_mov_b32 v13, 0x7ff00000
    v_bfe_u32 v16, v11, 3, 1
    v_cmp_eq_u32 vcc, 0, v16
    s_nop 1
    v_cndmask_b32 v{vRs}, v13, v12, vcc
    s_mul_i32 s{sHC}, s{sH}, 9216
    s_sub_u32 s{sHC}, s{sHC}, 8192
    s_mul_i32 s{sT0}, s{sW}, 40
    s_add_u32 s{sRED}, s{sT0}, s{sH}
    s_cmp_lt_u32 s{sW}, 2
    s_cbranch_scc1 Lr_red_done
    s_mov_b32 s{sRED}, -1
    s_cmp_lg_u32 s{sW}, 2
    s_cbranch_scc1 Lr_red_done
    s_cmp_ge_u32 s{sH}, 8
    s_cbranch_scc1 Lr_red_done
    s_add_u32 s{sRED}, s{sH}, 32
Lr_red_done:
    s_lshl_b32 s{sRM}, s{sRED}, 7
    s_cmp_eq_u32 s{sRED}, -1
    s_cselect_b32 s{sRM}, 0x40000000, s{sRM}
    s_lshl_b32 s{sSW}, s{sW}, 10
    s_add_u32 s{sSW}, s{sSW}, {SX_OFF}
    s_lshl_b32 s{sSMW}, s{sW}, 8
    s_add_u32 s{sSMW}, s{sSMW}, {SM_OFF}
    s_lshr_b32 s{sOW}, s{sW}, 1
    s_lshl_b32 s{sOW}, s{sOW}, 13
    s_and_b32 s{sT0}, s{sW}, 1
    s_lshl_b32 s{sT0}, s{sT0}, 3
    s_add_u32 s{sOW}, s{sOW}, s{sT0}
    s_lshl_b32 s{sT0}, s{sH}, 13
    s_lshl_b32 s{sT1}, s{sW}, 11
    s_add_u32 s{sT0}, s{sT0}, s{sT1}
    s_add_u32 s{sKX}, s{sT0}, {WS_KX}
    s_add_u32 s{sVX}, s{sT0}, {WS_VX}
    s_lshr_b32 s{sT0}, s{sT0}, 1
    s_add_u32 s{sKM}, s{sT0}, {WS_KM}
    s_lshr_b32 s{sT0}, s{sT0}, 1
    s_add_u32 s{sVM}, s{sT0}, {WS_VM}
    s_lshl_b32 s{sFLG}, s{sH}, 7
    s_add_u32 s{sFLG}, s{sFLG}, {WS_FLAGS+FL_KVM}
    s_mov_b32 s{sMEMR}, {WS_MEMX}
    s_mov_b32 s{sMEMW}, {WS_MEMX+MEM_SLOT}
    s_mov_b32 s{sMEMA}, {WS_MEMX+3*MEM_SLOT}
    s_mov_b32 s{sPARTW}, {WS_PART}
    s_mov_b32 s{sPARTX}, {WS_PART+PART_SLOT}
    s_mov_b32 s{sTAG}, 1
    s_mov_b32 s{sKVR}, 0
    s_mov_b32 s{sBUD}, 0x100000
    s_mov_b32 s{sSTEP}, 0
    s_mov_b32 s{sC}, {f2u(128**-0.5 * 1.4426950408889634):#x}
    """)
    a(f"""
    v_lshrrev_b32 v12, 1, v14
    v_lshrrev_b32 v13, 4, v11
    v_and_b32 v16, 1, v14
    v_lshlrev_b32 v16, 4, v16
    v_mov_b32 v17, 0x3f80
    v_lshlrev_b32 v16, v16, v17
    v_cmp_eq_u32 vcc, v12, v13
    v_mov_b32 v21, 0
    v_mov_b32 v22, 0
    v_cndmask_b32 v20, 0, v16, vcc
    v_mov_b32 v23, v20
    ds_write_b128 v{vA}, v[20:23] offset:{SEL_OFF}
    v_bfe_u32 v12, v11, 3, 1
    v_lshlrev_b32 v12, 4, v12
    v_lshlrev_b32 v16, v12, v17
    v_bfe_u32 v12, v11, 2, 1              ; a
    v_and_b32 v13, 3, v11                 ; r
    v_lshl_add_u32 v12, v12, 1, v13
    v_and_b32 v13, 2, v13
    v_lshl_add_u32 v12, v13, 2, v12
    v_cmp_eq_u32 vcc, 0, v12
    s_nop 1
    v_cndmask_b32 v24, 0, v16, vcc
    v_cmp_eq_u32 vcc, 1, v12
    s_nop 1
    v_cndmask_b32 v25, 0, v16, vcc
    v_cmp_eq_u32 vcc, 2, v12
    s_nop 1
    v_cndmask_b32 v26, 0, v16, vcc
    v_cmp_eq_u32 vcc, 3, v12
    s_nop 1
    v_cndmask_b32 v27, 0, v16, vcc
    ds_write_b128 v{vA}, v[24:27] offset:{RSEL_OFF}
    s_cmp_eq_u32 s{sW}, 3
    s_cselect_b64 s[{sFm}:{sFm+1}], 1, 0
    """)

def rec_mem0_load(a):
    a(f"""
    s_cmp_lg_u32 s{sH}, 0
    s_cbranch_scc1 Lr_nomem0a
    v_bfe_u32 v17, v11, 2, 2
    v_and_b32 v18, 1, v11
    v_lshl_add_u32 v17, v17, 1, v18
    v_mul_u32_u24 v17, 1152, v17
    v_bfe_u32 v18, v11, 1, 1
    v_lshl_add_u32 v17, v18, 4, v17
    v_lshrrev_b32 v18, 4, v11
    v_lshl_add_u32 v17, v18, 5, v17
    s_lshl_b32 s{sT0}, s{sW}, 8
    buffer_load_dwordx4 v[68:71], v17, {srd(S_M0)}, s{sT0} offen
    buffer_load_dwordx4 v[72:75], v17, {srd(S_M0)}, s{sT0} offen offset:128
    buffer_load_dwordx4 v[76:79], v17, {srd(S_M0)}, 0 offen offset:1024
Lr_nomem0a:
    """)

def rec_init_exchange(a):
    a(f"""
    s_cmp_lg_u32 s{sH}, 0
    s_cbranch_scc1 Lr_nomem0
    s_lshl_b32 s{sT0}, s{sW}, 11
    s_add_u32 s{sT0}, s{sT0}, s{sMEMR}
    s_add_u32 s{sT1}, s{sMEMR}, 8192
    s_waitcnt vmcnt(36)
    buffer_store_dwordx4 v[68:71], v{vA}, {srd(S_WS)}, s{sT0} offen sc1
    buffer_store_dwordx4 v[72:75], v{vA}, {srd(S_WS)}, s{sT0} offen offset:1024 sc1
    buffer_store_dwordx4 v[76:79], v{vA}, {srd(S_WS)}, s{sT1} offen sc1
Lr_nomem0:
    v_mov_b32 v12, -1
    v_mov_b32 v13, -1
    v_mov_b32 v14, -1
    v_mov_b32 v15, -1
    v_mov_b64 v[16:17], 0
    v_mov_b64 v[18:19], 0
    s_mov_b64 exec, s[{sFm}:{sFm+1}]
    buffer_store_dword v16, v{vA}, {srd(S_WS)}, s{sFLG} offen sc1
    s_mov_b64 exec, -1
    s_cmp_eq_u32 s{sRED}, -1
    s_cbranch_scc1 Lr_noarm
    """)
    for sl in (sPARTW, sPARTX):
        for m in range(4):
            a(f"s_add_u32 s{sT0}, s{sRM}, s{sl}")
            a(f"s_add_u32 s{sT0}, s{sT0}, {m*36864}")
            a(f"buffer_store_dwordx4 v[16:19], v{vRl}, {srd(S_WS)}, s{sT0} offen sc1")
    a(f"""
    s_add_u32 s{sT0}, s{sRM}, s{sMEMW}
    s_add_u32 s{sT1}, s{sT0}, {MEM_SLOT}
    s_add_u32 s{sT2}, s{sT0}, {2*MEM_SLOT}
    buffer_store_dword v12, v{vRs}, {srd(S_WS)}, s{sT0} offen sc1
    buffer_store_dword v12, v{vRs}, {srd(S_WS)}, s{sT1} offen sc1
    buffer_store_dword v12, v{vRs}, {srd(S_WS)}, s{sT2} offen sc1
Lr_noarm:
    """)

NINIT = 0
def rec_prologue_wave(a, w, opt):
    vm = Q(a,"vmcnt",63); lg = Q(a,"lgkmcnt",15)
    vD, vDo, vTq0, vTq1, vTo, vTmp = 66, 67, 60, 61, 62, 63
    a(f"""
    v_lshrrev_b32 v12, 4, v{vA}           ; lane
    v_lshrrev_b32 v13, 4, v12             ; i>>4
    v_and_b32 v14, 1, v13
    v_or_b32 v14, {w<<1}, v14             ; f
    v_lshlrev_b32 v14, 1, v14
    v_and_b32 v15, 15, v12
    v_xor_b32 v15, v15, v14
    v_lshlrev_b32 v15, 4, v15
    v_add_u32 v13, {4*w}, v13
    v_lshl_add_u32 v{vD}, v13, 13, v15
    v_lshrrev_b32 v13, 3, v12
    v_mul_u32_u24 v13, 1152, v13
    v_and_b32 v15, 7, v12
    v_xor_b32 v15, {w<<1}, v15
    v_lshl_add_u32 v{vDo}, v15, 4, v13
    v_lshrrev_b32 v13, 4, v12             ; gb
    v_bfe_u32 v14, v12, 2, 2              ; r
    v_and_b32 v15, 3, v12                 ; c
    v_lshrrev_b32 v16, 1, v13
    v_and_b32 v17, 1, v13
    v_and_b32 v18, 1, v14
    v_lshrrev_b32 v19, 1, v14
    v_lshlrev_b32 v20, 4, v16
    v_lshl_add_u32 v20, v17, 2, v20
    v_add_u32 v20, v20, v18
    v_lshl_add_u32 v20, v19, 3, v20
    v_lshl_add_u32 v21, v17, 1, v18
    v_lshl_add_u32 v21, v19, 2, v21
    v_lshlrev_b32 v20, 8, v20
    v_lshl_add_u32 v20, v15, 3, v20
    v_xor_b32 v22, {2*w}, v21
    v_lshl_add_u32 v{vTq0}, v22, 5, v20
    v_xor_b32 v22, {2*w+1}, v21
    v_lshl_add_u32 v{vTq1}, v22, 5, v20
    v_lshlrev_b32 v20, 5, v17
    v_lshl_add_u32 v20, v16, 2, v20
    v_add_u32 v20, v20, v18
    v_lshl_add_u32 v20, v19, 4, v20
    v_lshlrev_b32 v20, 7, v20
    v_lshl_add_u32 v20, v15, 3, v20
    v_lshl_add_u32 v21, v17, 1, v19
    v_xor_b32 v21, {w}, v21
    v_lshl_add_u32 v{vTo}, v21, 5, v20
    s_lshl_b32 s{sT1}, s{sH}, 8
    s_mul_i32 s{sT2}, s{sH}, 147456
    """)
    def issue(n):
        mat, idx = CHUNKS[n]; slot = n % 9
        base = RES_OFF + slot*16384
        if mat in "qkv":
            S = {"q":S_WQ,"k":S_WK,"v":S_WV}[mat]
            for q in range(4):
                a(f"s_mov_b32 m0, {base + (4*q+w)*1024}")
                a(f"s_add_u32 s{sT0}, s{sT1}, {idx*64*8192 + q*16*8192}")
                a(f"buffer_load_dwordx4 v{vD}, {srd(S)}, s{sT0} offen {opt.get('wflag','')} lds")
                vm.add(n)
        else:
            for ins in (2*w, 2*w+1, 8+2*w, 9+2*w):
                a(f"s_mov_b32 m0, {base + ins*1024}")
                a(f"s_add_u32 s{sT0}, s{sT2}, {ins*8*1152 + idx*128}")
                a(f"buffer_load_dwordx4 v{vDo}, {srd(S_WO)}, s{sT0} offen {opt.get('wflag','')} lds")
                vm.add(n)
    def dest(n, f):
        mat, idx = CHUNKS[n]
        if n >= 27:
            b = 12 + (n&1)*16 + f*8
            return f"v[{b}:{b+7}]"
        if mat in "qk" and idx < 8: idx = idx ^ (2*w)
        return FR[(mat, idx, f)]
    def reads(n):
        mat, idx = CHUNKS[n]; slot = n % 9
        base = RES_OFF + slot*16384
        for f in range(2):
            d = dest(n,f)
            if mat in "qkv":
                a(f"v_add_u32 v{vTmp}, {base}, v{vTq0 if f==0 else vTq1}")
                for jg in range(4):
                    off = (jg&1)*512 + (jg>>1)*8192
                    a(f"ds_read_b64_tr_b16 {sub(d,2*jg,2)}, v{vTmp} offset:{off}"); lg.add(("r",n))
            else:
                a(f"v_add_u32 v{vTmp}, {base}, v{vTo}")
                for jg in range(4):
                    off = f*8192 + (jg>>1)*1024 + (jg&1)*256
                    a(f"ds_read_b64_tr_b16 {sub(d,2*jg,2)}, v{vTmp} offset:{off}"); lg.add(("r",n))
    def writeback(n):
        slot = n % 9
        a(f"v_add_u32 v{vTmp}, {slot*16384}, v{vR0}")
        for f in range(2):
            d = dest(n,f)
            for hf in range(2):
                a(f"ds_write_b128 v{vTmp}, {sub(d,4*hf,4)} offset:{(2*f+hf)*1024}"); lg.add(("w",n))
    PF = opt.get("wflag", "")
    for n in range(9): issue(n)
    a(f"s_branch Lr_mid")
    a.label(f"Lr_pro2_{w}")
    a(f"s_lshl_b32 s{sT1}, s{sH}, 8\ns_mul_i32 s{sT2}, s{sH}, 147456")
    vm.q = vm.q + ["init"]*NINIT
    for n in range(37):
        if n < 36: vm.wait(n)
        lg.drain()
        a("s_barrier")
        if n == 9 and w == 0:
            a(f"""
            s_add_u32 s{sT0}, s{sXCC}, 1
            v_mov_b32 v64, s{sT0}
            v_mov_b32 v65, s{sH}
            s_mov_b64 exec, 1
            buffer_store_byte v64, v65, {srd(S_DBG)}, 0 offen offset:{DB_TAB} sc1
            s_mov_b64 exec, -1
            """); vm.add("sig")
        if n >= 1 and n-1+9 < 36: issue(n-1+9)
        if n == 29:
            a(f"""
            v_bfe_u32 v64, v{vA}, 4, 5
            buffer_load_ubyte v68, v64, {srd(S_DBG)}, 0 offen offset:{DB_TAB} sc1
            v_mov_b32 v64, 0
            buffer_load_dword v69, v64, {srd(S_DBG)}, 0 offen offset:{DB_INIT} sc1
            """); vm.add("tab"); vm.add("tab")
        if n >= 1 and n-1 >= 27: writeback(n-1)
        if n < 36: reads(n)
    lg.drain()
    a("s_barrier")

def rec_loop(a, mode, stamps=False, opt=None):
    opt = opt or {}
    comp_only = opt.get("comp_only", False)
    st = "" if mode=="f" else " sc1"
    P = f"Lr{mode}_"
    vm = Q(a,"vmcnt",63); lg = Q(a,"lgkmcnt",15)
    WS = srd(S_WS)
    names = opt.get("st", ["top","gotB","bar1","k8","bar2","bx","ow","bar3","wo","gotA","pub"])
    def sp(name):
        a.lines.append(f"; SP{mode}0 {name}")
        if stamps and name in names:
            i = names.index(name)
            a(f"{'s_memrealtime' if opt.get('rt') else 's_memtime'} s[{36+2*i}:{37+2*i}]")
    def delay(n):
        while n >= 64:
            k_ = min(n//64, 8); a(f"s_sleep {k_}"); n -= 64*k_
        while n >= 4:
            k_ = min(n//4, 16); a(f"s_nop {k_-1}"); n -= 4*k_
    def smf(acc, A, B): a(f"v_smfmac_f32_16x16x64_bf16 {vr(acc)}, {vr(A)}, {B}, v{vIdx}")
    def ldsr(dst, addr, off, tag, n=4):
        op = {4:"ds_read_b128",2:"ds_read_b64",1:"ds_read_b32"}[n]
        a(f"{op} {vr(dst,n)}, v{addr} offset:{off}"); lg.add(tag)
    Lf = lambda f: f"v[{L+8*f}:{L+8*f+7}]"
    L2f = lambda f: f"v[{KX+8*f}:{KX+8*f+7}]"
    z2 = lambda r: a(f"v_mov_b64 v[{r}:{r+1}], 0")
    cvt = lambda d,x,y: a(f"v_cvt_pk_bf16_f32 v{d}, v{x}, v{y}")
    add = lambda d,x,y: a(f"v_add_f32 v{d}, v{x}, v{y}")
    mf16 = lambda d,A,B: a(f"v_mfma_f32_16x16x16_bf16 {vr(d)}, {vr(A,2)}, {vr(B,2)}, 0")
    mf32 = lambda d,A,B,C=None: a(f"v_mfma_f32_16x16x32_bf16 {vr(d)}, {vr(A)}, {vr(B)}, {'0' if C is None else vr(C)}")
    QP = "quad_perm:[2,3,0,1] row_mask:0xf bank_mask:0xf"
    cnt = lambda inc: a(f"s_add_u32 s58, s58, {inc}") if stamps else None
    def rotate():
        a(f"""
        s_mov_b32 s{sMEMA}, s{sMEMR}
        s_mov_b32 s{sMEMR}, s{sMEMW}
        s_add_u32 s{sMEMW}, s{sMEMW}, {MEM_SLOT}
        s_and_b32 s{sMEMW}, s{sMEMW}, 0xffff
        s_or_b32 s{sMEMW}, s{sMEMW}, {WS_MEMX}
        s_mov_b32 s{sT3}, s{sPARTW}
        s_mov_b32 s{sPARTW}, s{sPARTX}
        s_mov_b32 s{sPARTX}, s{sT3}
        s_mov_b32 s{sT5}, s{sTAG}
        s_add_u32 s{sSTEP}, s{sSTEP}, 1
        s_bfe_u32 s{sTAG}, s{sSTEP}, 0x10001
        s_xor_b32 s{sTAG}, s{sTAG}, 1
        """)
    def prep():
        a(f"v_xor_b32 v{vT}, {1<<14}, v{vR1}")
        for p in range(4): ldsr(L+4*p, vR1, p*1024, "prep")
        for p in range(4): ldsr(KX+4*p, vT, p*1024, "prep")
        ldsr(SEL, vA, SEL_OFF, "prep")
        for r in range(0,16,2): z2(AQ0+r)
    def issueB():
        a(f"""
        buffer_load_dwordx4 {vr(A0)}, v{vW}, {WS}, s{sMEMR} offen sc1
        buffer_load_dwordx4 {vr(A1)}, v{vW}, {WS}, s{sMEMR} offen offset:1024 sc1
        buffer_load_dword v{vF1}, v{vQ}, {WS}, s{sMEMR} offen sc1
        """)
    def dump2():
        if stamps:
            a("s_waitcnt lgkmcnt(0)")
            a(f"s_sub_u32 m0, s{sSTEP}, 1")
            for i in range(len(names)): a(f"v_writelane_b32 v{244+i}, s{36+2*i}, m0")
            a(f"v_writelane_b32 v255, s58, m0")
            a("s_mov_b32 s58, 0")
    prep()
    if stamps: a("s_mov_b32 s58, 0")
    a.label(P+"pollB")
    if opt.get("kvcheck"):
        a(f"s_add_u32 s{sT0}, s{sSTEP}, 1\ns_mov_b32 s{sPF}, 0\ns_cmp_ge_u32 s{sT0}, s{sKVR}\ns_cbranch_scc1 {P}kvwait")
        a.label(P+"kvok")
    twoB = opt.get("gapB", 0)
    twoA = opt.get("gapA", 0)
    issueB()
    if twoB:
        delay(twoB); issueB()
    a.label(P+"top")
    sp("top")
    B0,B1,B2,B3 = A0,A1,A2,A3
    def q(pos,f,A): smf((AQ0,AQ1)[f], A, Lf(f) if pos==8 else FR[("q",pos,f)])
    def k(pos,f,A): smf((AK0,AK1)[f], A, L2f(f) if pos==3 else (Lf(f) if pos in (1,5,7) else FR[("k",pos,f)]))
    AV0, AV1 = B3, B1
    def v(kap,f,A): smf((AV0,AV1)[f], A, FR[("v",kap,f)] if kap>=2 else Lf(f))
    xr = lambda j: a(f"v_xor_b32 v{vT}, {j*2048}, v{vW}")
    xq = lambda j: a(f"v_xor_b32 v{vS}, {j<<14}, v{vR1}")
    vm.clear(); lg.q=["x"]*9
    xb = 3 if twoB else 0
    a(f"s_waitcnt vmcnt({2+xb})")
    a(f"v_max3_u32 v{vS}, v{A0}, v{A0+1}, v{A0+2}"); a(f"v_max_u32 v{vS}, v{vS}, v{A0+3}")
    q(0,0,B0)
    a(f"s_waitcnt vmcnt({1+xb})")
    a(f"v_max3_u32 v{vS}, v{vS}, v{A1}, v{A1+1}")
    q(0,1,B0)
    a(f"s_waitcnt vmcnt({xb})")
    a(f"v_max3_u32 v{vT}, v{A1+2}, v{A1+3}, v{vF1}")
    a(f"v_max_u32 v{vS}, v{vS}, v{vT}")
    a(f"v_cmp_eq_u32 vcc, -1, v{vS}")
    k(0,0,B0)
    a("s_nop 0" if comp_only else f"s_cbranch_vccnz {P}retryB")
    a.label(P+"gotB")
    if opt.get("steptime"):
        a(f"s_memrealtime s[92:93]\ns_memtime s[56:57]")
    sp("gotB")
    k(0,1,B0); a(f"ds_write_b128 v{vW}, {vr(B0)}"); a(f"v_xor_b32 v{vS}, 2048, v{vW}")
    q(1,0,B1); a(f"ds_write_b128 v{vW}, {vr(B1)} offset:1024"); xr(2)
    q(1,1,B1); a(f"ds_write_b32 v{vQ}, v{vF1}")
    a("s_waitcnt vmcnt(0) lgkmcnt(0)"); lg.clear(); a("s_barrier")
    if opt.get("steptime"):
        a(f"s_mov_b32 m0, s{sSTEP}\nv_writelane_b32 v254, s92, m0\nv_writelane_b32 v255, s56, m0")
    sp("bar1")
    ldsr(B2, vS, 0, "p2")
    k(1,0,B1); ldsr(B3, vS, 1024, "p3")
    k(1,1,B1); ldsr(B0, vA, 8192, "k8")
    lg.wait("p2")
    q(2,0,B2); ldsr(B1, vT, 0, "p4")
    q(2,1,B2); ldsr(L, vR0, 0, ("L",0))
    lg.wait("p3")
    q(3,0,B3); ldsr(L+4, vR0, 1024, ("L",0))
    q(3,1,B3); ldsr(L+8, vR0, 2048, ("L",1))
    k(2,0,B2); ldsr(L+12, vR0, 3072, ("L",1))
    k(2,1,B2); ldsr(B2, vT, 1024, "p5"); xr(3)
    k(3,0,B3); a(f"buffer_load_dwordx4 {vr(KX)}, v{vA}, {WS}, s{sKX} offen sc1"); vm.add("kx")
    k(3,1,B3); ldsr(B3, vT, 0, "p6"); xq(2)
    lg.wait(("L",1))
    q(8,0,B0); a(f"buffer_load_dwordx4 {vr(KX+4)}, v{vA}, {WS}, s{sKX} offen offset:1024 sc1"); vm.add("kx")
    q(8,1,B0); ldsr(L, vS, 0, ("L",0))
    q(4,0,B1); ldsr(L+4, vS, 1024, ("L",0))
    q(4,1,B1); ldsr(L+8, vS, 2048, ("L",1))
    lg.wait("p5")
    q(5,0,B2); ldsr(L+12, vS, 3072, ("L",1)); xq(3)
    q(5,1,B2); a(f"buffer_load_dwordx4 {vr(VX)}, v{vA}, {WS}, s{sVX} offen sc1"); vm.add("vx")
    k(4,0,B1); a(f"buffer_load_dwordx4 {vr(VX+4)}, v{vA}, {WS}, s{sVX} offen offset:1024 sc1"); vm.add("vx")
    k(4,1,B1); ldsr(B1, vT, 1024, "p7")
    lg.wait("p6")
    q(6,0,B3); a(f"s_add_u32 s{sKX}, s{sKX}, 0x40000\ns_add_u32 s{sVX}, s{sVX}, 0x40000")
    q(6,1,B3)
    if not opt.get("nopf"):
        if opt.get("kvcheck"): a(f"s_or_b32 s{sPF}, s{sPF}, s{sKX}")
        a(f"buffer_load_dword v{vF1}, v{vF0}, {WS}, s{sPF if opt.get('kvcheck') else sKX} offen sc1"); vm.add("pf")
    lg.wait(("L",1))
    k(5,0,B2); ldsr(L, vS, 0, ("L",0))
    lg.wait("p7")
    q(7,0,B1); ldsr(L+4, vS, 1024, ("L",0))
    q(7,1,B1); a(f"v_add_u32 v{vT}, s{sSW}, v{vA}")
    k(5,1,B2); ldsr(L+8, vS, 2048, ("L",1))
    k(6,0,B3); ldsr(L+12, vS, 3072, ("L",1))
    k(6,1,B3); a(f"v_lshrrev_b32 v{vS}, 2, v{vA}"); z2(AV0)
    a(f"v_mov_b32 v{AV0+2}, s{sSTEP}")
    k(8,0,B0); add(AQ0, AQ0, AQ0+2); add(AQ0+1, AQ0+1, AQ0+3)
    k(8,1,B0); add(AQ1, AQ1, AQ1+2); add(AQ1+1, AQ1+1, AQ1+3)
    lg.wait(("L",0))
    k(7,0,B1)
    if not opt.get("noflag"):
        a(f"s_mov_b64 exec, s[{sFm}:{sFm+1}]")
        a(f"buffer_store_dword v{AV0+2}, v{vA}, {WS}, s{sFLG} offen sc1"); vm.add("flag")
        a("s_mov_b64 exec, -1")
    cvt(AQ0+2, AQ0, AQ0+1); cvt(AQ0+3, AQ1, AQ1+1)
    lg.wait(("L",1))
    k(7,1,B1); ldsr(L, vR0, 16384, ("L",0)); z2(AV0+2)
    sp("k8")
    mf16(AQ1, AQ0+2, SEL); ldsr(L+4, vR0, 16384+1024, ("L",0)); z2(AV1)
    mf16(B2, AQ0+2, SEL+2); ldsr(L+8, vR0, 16384+2048, ("L",1)); z2(AV1+2)
    add(AK0, AK0, AK0+2); add(AK0+1, AK0+1, AK0+3)
    add(AK1, AK1, AK1+2); add(AK1+1, AK1+1, AK1+3)
    cvt(AK0+2, AK0, AK0+1); cvt(AK0+3, AK1, AK1+1)
    cvt(AQ0, AQ1, AQ1+1); cvt(AQ0+1, AQ1+2, AQ1+3)
    mf16(AK1, AK0+2, SEL); ldsr(L+12, vR0, 16384+3072, ("L",1))
    cvt(AQ0+2, B2, B2+1)
    mf16(SEL, AK0+2, SEL+2)
    cvt(AQ0+3, B2+2, B2+3)
    v(8,0,B0)
    vm.wait("kx")
    mf32(B2, KX, AQ0)
    mf32(AQ1, KX+4, AQ0)
    a(f"v_add_u32 v{KX+5}, s{sSMW}, v{vS}")
    cvt(AK0, AK1, AK1+1); cvt(AK0+1, AK1+2, AK1+3)
    cvt(AK0+2, SEL, SEL+1); cvt(AK0+3, SEL+2, SEL+3)
    v(8,1,B0); ldsr(SEL, vA, 0, "S4")
    mf32(AK1, AK0, AQ0); ldsr(B0, vA, 2*1024, "a0")
    for r in range(4): a(f"v_cndmask_b32 v{KX+r}, v{AQ1+r}, v{B2+r}, {MH0}")
    lg.wait("S4")
    v(0,0,SEL); a(f"ds_write_b128 v{vT}, {vr(KX)}"); lg.add("sw")
    a(f"v_cndmask_b32 v{KX+4}, v{AK1+1}, v{AK1}, {MH0}")
    v(0,1,SEL); a(f"ds_write_b32 v{KX+5}, v{KX+4}"); lg.add("sw")
    lg.wait("a0")
    v(2,0,B0); ldsr(B2, vA, 3*1024, "a2"); a(f"v_xor_b32 v{vT}, 1024, v{vT}")
    v(2,1,B0)
    if not opt.get("nokv"): a(f"buffer_store_dwordx4 {vr(AK0)}, v{vA}, {WS}, s{sKM} offen sc1"); vm.add("km")
    lg.wait("sw")
    a("s_barrier")
    sp("bar2")
    m, m2 = KX+6, KX+7
    D = AQ1
    ldsr(AQ0, vT, 0, ("sx",0)); a(f"v_xor_b32 v{vT}, 3072, v{vT}")
    lg.wait("a2")
    v(3,0,B2); ldsr(AQ1, vT, 0, ("sx",1)); a(f"v_xor_b32 v{vT}, 1024, v{vT}")
    v(3,1,B2); ldsr(AK0, vT, 0, ("sx",2))
    a(f"ds_read2st64_b32 {vr(AK1,2)}, v{vS} offset0:{SM_OFF//256} offset1:{SM_OFF//256+1}"); lg.add("sm")
    a(f"ds_read2st64_b32 {vr(AK1+2,2)}, v{vS} offset0:{SM_OFF//256+2} offset1:{SM_OFF//256+3}"); lg.add("sm")
    ldsr(SEL, vA, 4*1024, "S4"); ldsr(B0, vA, 5*1024, "a0"); ldsr(B2, vA, 6*1024, "a2")
    lg.wait(("sx",0))
    for r in range(4): add(KX+r, KX+r, AQ0+r)
    lg.wait(("sx",2))
    for r in range(4): add(AQ1+r, AQ1+r, AK0+r)
    lg.wait("sm")
    add(AK1, AK1, AK1+1); add(AK1+2, AK1+2, AK1+3)
    for r in range(4): add(AQ0+r, KX+r, AQ1+r)
    add(KX, AK1, AK1+2)
    a(f"v_max3_f32 v{m}, v{AQ0}, v{AQ0+1}, v{AQ0+2}")
    a(f"v_max3_f32 v{m}, v{m}, v{AQ0+3}, v{KX}")
    lg.wait("S4")
    v(4,0,SEL); ldsr(L, vR0, 2*16384, ("L",0))
    a(f"v_max_f32_dpp v{m}, v{m}, v{m} {QP}")
    a(f"v_mov_b32 v{m2}, v{m}")
    v(4,1,SEL); ldsr(L+4, vR0, 2*16384+1024, ("L",0))
    a(f"v_permlane16_swap_b32 v{m}, v{m2}")
    a(f"v_max_f32 v{m}, v{m}, v{m2}")
    a(f"v_mov_b32 v{m2}, v{m}")
    lg.wait("a0")
    v(5,0,B0); ldsr(SEL, vA, 7*1024, "S4")
    a(f"v_permlane32_swap_b32 v{m}, v{m2}")
    a(f"v_max_f32 v{m}, v{m}, v{m2}")
    v(5,1,B0); ldsr(L+8, vR0, 2*16384+2048, ("L",1))
    a(f"v_mul_f32 v{m}, s{sC}, v{m}")
    srcs = [AQ0,AQ0+1,AQ0+2,AQ0+3,KX]
    for s_ in srcs[:4]: a(f"v_fma_f32 v{s_}, v{s_}, s{sC}, -v{m}")
    lg.wait("a2")
    v(6,0,B2); ldsr(L+12, vR0, 2*16384+3072, ("L",1))
    for s_ in srcs[:2]: a(f"v_exp_f32 v{s_}, v{s_}")
    v(6,1,B2); ldsr(B0, vA, 1*1024, "a0")
    for s_ in srcs[2:4]: a(f"v_exp_f32 v{s_}, v{s_}")
    lg.wait("S4")
    v(7,0,SEL)
    c0,c1 = KX+2, KX+3
    BL, BH = AK0, AK1
    cvt(c0, AQ0, AQ0+1); cvt(c1, AQ0+2, AQ0+3)
    v(7,1,SEL)
    a(f"v_cndmask_b32 v{BL}, 0, v{c0}, {MH0}")
    a(f"v_cndmask_b32 v{BL+1}, 0, v{c1}, {MH0}")
    a(f"v_cndmask_b32 v{BH+2}, v{c0}, 0, {MH0}")
    a(f"v_cndmask_b32 v{BH+3}, v{c1}, 0, {MH0}")
    lg.wait("a0")
    v(1,0,B0)
    a(f"v_mov_b32_dpp v{BH}, v{BL} {QP}")
    v(1,1,B0)
    sp("bx")
    a(f"v_mov_b32_dpp v{BH+1}, v{BL+1} {QP}")
    a(f"v_mov_b32_dpp v{BL+2}, v{BH+2} {QP}")
    a(f"v_mov_b32_dpp v{BL+3}, v{BH+3} {QP}")
    a(f"v_fma_f32 v{KX}, v{KX}, s{sC}, -v{m}")
    vm.wait("vx")
    mf32(D, VX+4, BH)
    a(f"v_exp_f32 v{KX}, v{KX}")
    mf32(D, VX, BL, D)
    add(m, AQ0, AQ0+1); add(m2, AQ0+2, AQ0+3)
    a(f"v_cvt_pk_bf16_f32 v{KX+1}, v{KX}, 0")
    add(AV0, AV0, AV0+2); add(AV0+1, AV0+1, AV0+3)
    a(f"v_lshlrev_b32 v{KX+2}, 16, v{KX+1}")
    add(AV1, AV1, AV1+2); add(AV1+1, AV1+1, AV1+3)
    a(f"v_cndmask_b32 v{KX+4}, v{KX+2}, v{KX+1}, {MH0}")
    add(m, m, m2)
    BM = AQ0
    z2(BM+2)
    a(f"v_or_b32_dpp v{KX+4}, v{KX+4}, v{KX+4} {QP}")
    add(m, m, KX)
    cvt(KX, AV0, AV0+1); cvt(KX+1, AV1, AV1+1)
    a(f"v_cndmask_b32 v{BM}, 0, v{KX+4}, {MH0}")
    a(f"v_cndmask_b32 v{BM+1}, v{KX+4}, 0, {MH0}")
    a(f"v_add_f32_dpp v{m}, v{m}, v{m} {QP}")
    a(f"v_lshrrev_b32 v{vS}, 1, v{vA}")
    mf32(D, KX, BM, D)
    if not opt.get("nokv"): a(f"buffer_store_dwordx2 {vr(KX,2)}, v{vS}, {WS}, s{sVM} offen sc1"); vm.add("vm")
    a(f"v_mov_b32 v{m2}, v{m}")
    a(f"v_add_u32 v{vS}, s{sOW}, v{vA}")
    a(f"v_add_u32 v{vT}, {7*16384}, v{vR0}")
    a(f"v_permlane16_swap_b32 v{m}, v{m2}")
    add(m, m, m2)
    a(f"v_mov_b32 v{m2}, v{m}")
    a(f"""
    s_cmp_eq_u32 s{sSTEP}, 63
    s_cbranch_scc1 {P}done
    """)
    a(f"v_permlane32_swap_b32 v{m}, v{m2}")
    add(m, m, m2)
    a(f"v_rcp_f32 v{m}, v{m}")
    z2(SEL)
    for r in range(4): a(f"v_mul_f32 v{D+r}, v{D+r}, v{m}")
    cvt(KX+2, D, D+1); cvt(KX+3, D+2, D+3)
    a(f"ds_write_b64 v{vS}, {vr(KX+2,2)}"); lg.add("ow")
    sp("ow")
    z2(SEL+2)
    for r in range(0,16,2): z2(AQ0+r)
    for r in range(0,8,2): z2(VX+r)
    lg.wait("ow")
    a("s_barrier")
    OA = KX
    ldsr(OA, vA, 0, "o0"); ldsr(OA+4, vA, 8192, "o1")
    n0 = opt.get("n0", 2)
    def oread2(j):
        if j<4: ldsr(L+4*j, vT, j*1024, "O7")
        else: ldsr(A0+4*(j-4), vT, 16384+(j-4)*1024, "O8")
    for j in range(n0): oread2(j)
    sp("bar3")
    def wofrag(c,u):
        if c==7: return Lf(u)
        if c==8: return f"v[{A0+8*u}:{A0+8*u+7}]"
        return FR[("o",c,u)]
    accs = {0:SEL, 1:AQ0, 2:AQ1, 3:AK0, 4:AK1, 5:VX, 6:VX+4, 7:SEL, 8:AQ0}
    def pv(c):
        x = accs[c]
        return [f"v_add_f32 v{x}, v{x}, v{x+2}", f"v_add_f32 v{x+1}, v{x+1}, v{x+3}", f"v_cvt_pk_bf16_f32 v{x}, v{x}, v{x+1}\nv_bfi_b32 v{x}, 1, s{sTAG}, v{x}"]
    def ps(c):
        return f"buffer_store_dword v{accs[c]}, v{vQ}, {WS}, s{(sT0,sT1,sT2)[c>>2]} offen offset:{(c&3)*1024}{st}"
    order = [(c,u) for c in range(9) for u in range(2)]
    def oread(j):
        if j<4: ldsr(L+4*j, vT, j*1024, "O7")
        else: ldsr(A0+4*(j-4), vT, 16384+(j-4)*1024, "O8")
    Z = lambda r: f"v_mov_b64 v[{r}:{r+1}], 0"
    sal = {0:[f"s_add_u32 s{sT0}, s{sPARTW}, s{sHC}", f"s_add_u32 s{sKM}, s{sKM}, 0x20000"], 1:[f"s_add_u32 s{sT1}, s{sT0}, 4096", f"s_add_u32 s{sVM}, s{sVM}, 0x10000"],
           2:[f"s_add_u32 s{sT2}, s{sT0}, 8192", f"s_add_u32 s{sL0}, s{sRM}, s{sPARTW}"], 3:[f"s_add_u32 s{sL0+1}, s{sL0}, 36864", f"s_add_u32 s{sL0+2}, s{sL0}, {2*36864}"],
           4:[f"s_add_u32 s{sL0+3}, s{sL0}, {3*36864}", f"s_add_u32 s{sT4}, s{sRM}, s{sMEMW}"]}
    def pvl(c): return "\n".join(pv(c)).split("\n")
    vq = pvl(0)+pvl(1)+[Z(SEL),Z(SEL+2)]+pvl(2)+[Z(AQ0),Z(AQ0+2)]+pvl(3)+pvl(4)+pvl(5)+pvl(6)+pvl(7)
    per = {4:3,5:3,6:2,7:0,8:3,9:3,10:3,11:3,12:2,13:2,14:2,15:2,16:0,17:4}
    per = {4:3,5:3,6:2,7:3,8:3,9:3,10:3,11:2,12:2,13:3,14:1,15:4,16:0,17:4}
    stores = {6:[0],7:[1],9:[2],11:[3],13:[4],15:[5],16:[6]}
    sched = {}
    for i in range(18):
        n = per.get(i,0)
        sched[i] = ([ps(c) for c in stores.get(i,[])], vq[:n]); vq = vq[n:]
    assert not vq
    lg.wait("o0")
    for i,(c,u) in enumerate(order):
        if i==1: lg.wait("o1")
        if (c,u)==(7,0): lg.wait("O7")
        if (c,u)==(8,0): lg.wait("O8")
        smf(accs[c], OA+4*u, wofrag(c,u))
        for l in sal.get(i,[]): a(l)
        if i + n0 < 8 and i < 6: oread2(i + n0)
        if i == 5:
            for j in range(6 + n0, 8): oread2(j)
        mem, val = sched.get(i, ([],[]))
        for l in mem+val: a(l)
    a(ps(7))
    for l in pv(8): a(l)
    a(ps(8))
    sp("wo")
    RS, RD, R0 = VX, VX+4, A0
    a(f"""
    s_cmp_eq_u32 s{sRED}, -1
    {"s_branch" if comp_only else "s_cbranch_scc1"} {P}nored
    """)
    def loadsA():
        for mm in range(4):
            a(f"buffer_load_dwordx4 {vr(R0+4*mm)}, v{vRl}, {WS}, s{sL0+mm} offen sc1")
    lg.clear()
    ldsr(RS, vA, RSEL_OFF, "rs")
    a(f"s_cmp_lg_u32 s{sW}, 1\ns_cbranch_scc1 {P}pollA")
    delay(opt.get("dA", 256))
    a.label(P+"pollA")
    loadsA()
    rotate()
    if True:
        a(f"v_xor_b32 v{vT}, {1<<14}, v{vR1}")
        for p in range(4): ldsr(L+4*p, vR1, p*1024, "prep")
        for p in range(2): ldsr(KX+4*p, vT, p*1024, "prep")
        ldsr(SEL, vA, SEL_OFF, "prep")
        for r in range(0,16,2): z2(AQ0+r)
    if twoA:
        delay(max(twoA-160,0)); loadsA()
    a("s_waitcnt lgkmcnt(7)")
    a.label(P+"chkA")
    a(f"s_cmp_eq_u32 s{sT5}, 0\ns_cbranch_scc1 {P}chkA0")
    def chain(op, extra=0):
        for mm in range(4):
            a(f"s_waitcnt vmcnt({3-mm+extra})")
            b = R0+4*mm
            if not extra: mf32(RD, RS, b, None if mm==0 else RD)
            if mm==0:
                a(f"v_bitop3_b32 v{vS}, v{b}, v{b+1}, v{b+2} bitop3:{op}"); a(f"v_bitop3_b32 v{vS}, v{vS}, v{b+3}, 1 bitop3:{op if op==0x80 else 0xfc}")
            else:
                a(f"v_bitop3_b32 v{vS}, v{vS}, v{b}, v{b+1} bitop3:{op}"); a(f"v_bitop3_b32 v{vS}, v{vS}, v{b+2}, v{b+3} bitop3:{op}")
            if extra: mf32(RD, RS, b, None if mm==0 else RD)
        if extra: a("s_nop 1")
    xa = 4 if twoA else 0
    chain(0x80, xa)
    a(f"v_cmp_ne_u32 vcc, 1, v{vS}")
    a(f"s_cbranch_vccnz {P}failA1")
    a.label(P+"gotA")
    sp("gotA")
    a(f"""
    s_nop 3
    v_add_f32_dpp v{RD}, v{RD}, v{RD} row_ror:8 row_mask:0xf bank_mask:0xf
    v_add_f32_dpp v{RD+1}, v{RD+1}, v{RD+1} row_ror:8 row_mask:0xf bank_mask:0xf
    v_cvt_pk_bf16_f32 v{RD}, v{RD}, v{RD+1}
    buffer_store_dword v{RD}, v{vRs}, {WS}, s{sT4} offen{st}
    """)
    sp("pub")
    a(f"s_add_u32 s{sT0}, s{sRM}, s{sMEMA}")
    a(f"v_mov_b32 v{vS}, -1")
    a(f"buffer_store_dword v{vS}, v{vRs}, {WS}, s{sT0} offen{st}")
    for p in range(2,4): ldsr(KX+4*p, vT, p*1024, "prep")
    dump2()
    if opt.get("align", 0):
        a(f"s_cmp_lg_u32 s{sW}, 1\ns_cbranch_scc1 {P}alignB")
        delay(opt.get("dB", 128) - (64 if stamps else 0))
        a.label(P+"alignB")
        a("s_barrier")
    else:
        a(f"s_cmp_eq_u32 s{sW}, 1\ns_cbranch_scc1 {P}lateB")
        delay(opt.get("dB0", 192))
        a.label(P+"lateB")
        delay(opt.get("dB", 128) - (64 if stamps else 0))
    a(f"s_branch {P}pollB")
    a.label(P+"chkA0")
    chain(0xfe, xa)
    a(f"v_and_b32 v{vS}, 1, v{vS}")
    a(f"v_cmp_ne_u32 vcc, 0, v{vS}")
    a(f"s_cbranch_vccz {P}gotA")
    if twoA:
        cnt(0x10000)
        chain(0xfe)
        a(f"v_and_b32 v{vS}, 1, v{vS}\nv_cmp_ne_u32 vcc, 0, v{vS}\ns_cbranch_vccz {P}gotA\ns_branch {P}failA")
        a.label(P+"failA1")
        cnt(0x10000)
        chain(0x80)
        a(f"v_cmp_ne_u32 vcc, 1, v{vS}\ns_cbranch_vccz {P}gotA")
    else:
        a.label(P+"failA1")
    a.label(P+"failA")
    cnt(0x10000)
    loadsA()
    if twoA:
        delay(max(twoA-50,0)); loadsA()
    a(f"""
    s_sub_u32 s{sBUD}, s{sBUD}, 1
    s_cbranch_scc0 {P}chkA
    s_mov_b32 s{sBUD}, 0
    s_branch {P}gotA
    """)
    a.label(P+"retryB")
    cnt(1)
    if not twoB: issueB()
    a("s_nop 7")
    for r in range(0,12,2): z2(AQ0+r)
    if twoB:
        a(f"""
        s_waitcnt vmcnt(2)
        v_max3_u32 v{vS}, v{A0}, v{A0+1}, v{A0+2}
        s_waitcnt vmcnt(1)
        v_max3_u32 v{vS}, v{vS}, v{A0+3}, v{A1}
        v_max3_u32 v{vS}, v{vS}, v{A1+1}, v{A1+2}
        s_waitcnt vmcnt(0)
        v_max3_u32 v{vS}, v{vS}, v{A1+3}, v{vF1}
        v_cmp_eq_u32 vcc, -1, v{vS}
        """)
        q(0,0,B0)
        a(f"s_cbranch_vccnz {P}retryB2")
        q(0,1,B0); k(0,0,B0)
        a(f"s_branch {P}gotB")
        a.label(P+"retryB2")
        cnt(0x100)
        issueB(); delay(max(twoB-40,0))
        a("s_nop 7")
        for r in range(0,4,2): z2(AQ0+r)
        issueB()
    a(f"""
    s_sub_u32 s{sBUD}, s{sBUD}, 1
    s_cbranch_scc0 {P}top
    s_mov_b32 s{sBUD}, 0
    s_waitcnt vmcnt(0)
    s_branch {P}gotB
    """)
    if opt.get("kvcheck"):
        a.label(P+"kvwait")
        a(f"""
        s_waitcnt vmcnt(0)
        v_lshlrev_b32 v{A2}, 3, v{vA}
        s_mov_b32 s{sT1}, {WS_FLAGS+FL_EXP}
        s_mov_b64 exec, 0x1ff
        buffer_load_dword v{A3}, v{A2}, {WS}, s{sT1} offen sc1
        s_waitcnt vmcnt(0)
        v_cmp_le_u32 vcc, 32, v{A3}
        s_mov_b64 exec, -1
        s_ff0_i32_b32 s{sT1}, vcc_lo
        s_lshl_b32 s{sKVR}, s{sT1}, 3
        s_sub_u32 s{sKVR}, s{sKVR}, 8
        s_cmp_lt_u32 s{sT1}, 2
        s_cbranch_scc0 {P}kvn
        s_lshl_b32 s{sKVR}, s{sT1}, 2
{P}kvn:
        s_cmp_eq_u32 s{sKVR}, 64
        s_cselect_b32 s{sKVR}, 1000, s{sKVR}
        s_cmp_lt_u32 s{sT0}, s{sKVR}
        s_cbranch_scc1 {P}kvok
        s_mov_b32 s{sPF}, 0x40000000
        s_cmp_lt_u32 s{sSTEP}, s{sKVR}
        s_cbranch_scc1 {P}kvok
        s_sleep 1
        s_sub_u32 s{sBUD}, s{sBUD}, 1
        s_cbranch_scc0 {P}kvwait
        s_mov_b32 s{sBUD}, 0
        s_branch {P}kvok
        """)
    a.label(P+"nored")
    lg.clear()
    prep()
    rotate()
    dump2()
    if opt.get("align", 0): a("s_barrier")
    else: delay(opt.get("dN", 800) - (64 if stamps else 0))
    a(f"s_branch {P}pollB")
    a.label(P+"done")
    if stamps:
        a(f"v_lshlrev_b32 v{vS}, 2, v{vA}")
        for i in range(len(names)): a(f"buffer_store_dword v{244+i}, v{vS}, {WS}, s{sSTO} offen offset:{4*i}")
        a(f"buffer_store_dword v255, v{vS}, {WS}, s{sSTO} offen offset:60")
    a(f"""
    s_waitcnt vmcnt(0) lgkmcnt(0)
    s_barrier
    s_mov_b64 exec, s[{sFm}:{sFm+1}]
    v_mov_b32 v{SEL}, 64
    buffer_store_dword v{SEL}, v{vA}, {WS}, s{sFLG} offen sc1
    s_mov_b64 exec, -1
    """)
    a.label(P+"exit")
    return len(names)

def rec_role(a, stamps=False, opt=None):
    opt = opt or {}
    a(f"""
    v_lshrrev_b32 v10, 6, v0
    v_and_b32 v11, 63, v0
    v_readfirstlane_b32 s{sW}, v10
    v_lshlrev_b32 v{vA}, 4, v11
    """)
    if opt.get("claim"):
        a.label("Lr_try")
        a(f"""
        s_lshl_b32 s{sT0}, 1, s{sH}
        v_mov_b32 v64, s{sT0}
        v_mov_b32 v65, 0
        s_cmp_eq_u32 s{sW}, 0
        s_cselect_b64 exec, 1, 0
        buffer_atomic_or v64, v65, {srd(S_DBG)}, 0 offen offset:{DB_ROLE} sc0
        s_mov_b64 exec, -1
        """)
    rec_mem0_load(a)
    for w in range(1,4):
        a(f"s_cmp_eq_u32 s{sW}, {w}")
        a(f"s_cbranch_scc1 Lr_pro{w}")
    for w in range(4):
        a.label(f"Lr_pro{w}")
        rec_prologue_wave(a, w, opt)
        a("s_branch Lr_prodone")
    a.label("Lr_mid")
    if opt.get("claim"):
        a(f"""
        s_cmp_lg_u32 s{sW}, 0
        s_cbranch_scc1 Lr_c1
        s_waitcnt vmcnt(36)
        s_mov_b64 exec, 1
        ds_write_b32 v65, v64
        s_mov_b64 exec, -1
        s_waitcnt lgkmcnt(0)
Lr_c1:
        s_barrier
        ds_read_b32 v64, v65
        s_waitcnt lgkmcnt(0)
        v_readfirstlane_b32 s{sT0}, v64
        s_barrier
        s_bitcmp0_b32 s{sT0}, s{sH}
        s_cbranch_scc1 Lr_mine
        s_waitcnt vmcnt(0)
        s_barrier
        v_lshrrev_b32 v11, 4, v{vA}
        s_cmp_eq_u32 s{sT0}, -1
        s_cbranch_scc1 Lr_none
        s_ff0_i32_b32 s{sH}, s{sT0}
        s_branch Lr_try
Lr_none:
        s_lshl_b32 s{sT0}, s{sW}, 6
        v_add_u32 v0, s{sT0}, v11
        s_cmp_eq_u32 s3, 0
        s_cbranch_scc1 L_par
        s_branch L_p23
Lr_mine:
        """)
    if opt.get("tstamp"): a("s_memrealtime s[36:37]")
    rec_setup(a)
    rec_init_exchange(a)
    a("s_waitcnt vmcnt(0)" if False else "")
    for w in range(1,4):
        a(f"s_cmp_eq_u32 s{sW}, {w}")
        a(f"s_cbranch_scc1 Lr_pro2_{w}")
    a("s_branch Lr_pro2_0")
    a.label("Lr_prodone")
    if opt.get("tstamp"): a("s_memrealtime s[38:39]")
    a(f"""
    v_bfe_u32 v10, v{vA}, 4, 5
    v_mov_b32 v12, 0
    s_mov_b32 s{sT1}, 0x4000000
    s_branch Lr_wchk
Lr_wbar:
    buffer_load_ubyte v68, v10, {srd(S_DBG)}, 0 offen offset:{DB_TAB} sc1
    buffer_load_dword v69, v12, {srd(S_DBG)}, 0 offen offset:{DB_INIT} sc1
    s_sub_u32 s{sT1}, s{sT1}, 1
    s_cmp_eq_u32 s{sT1}, 0
    s_cbranch_scc1 Lr_exit
Lr_wchk:
    s_waitcnt vmcnt(0)
    {"v_min_u32 v11, v68, v69" if opt.get("kvcheck") else "v_mov_b32 v11, v68"}
    v_cmp_eq_u32 vcc, 0, v11
    s_cbranch_vccnz Lr_wbar
    s_add_u32 s{sT0}, s{sXCC}, 1
    v_cmp_ne_u32 vcc, s{sT0}, v68
    s_cbranch_vccnz Lr_slow
    s_memrealtime s[96:97]
    """)
    n = rec_loop(a, "f", stamps, opt)
    a("s_branch Lr_exit")
    a.label("Lr_slow")
    rec_loop(a, "s", False, opt)
    a.label("Lr_exit")
    return n
```

```python
import sys
from common import *
from emit import *
import rec, par
from rec import *
from par import *
NAME = "recurrent_scan__memory_aug_recurrent_mem_tr__geglu_ffn__prompt"
def generate(opt=None):
    opt = opt or {}
    a = Asm()
    a("s_cmp_lt_u32 s2, 256\ns_cbranch_scc1 L_go\ns_endpgm\nL_go:")
    srds = [(S_WS,104,WS_SIZE),(S_WQ,16,576*8192),(S_WK,24,576*8192),(S_WV,32,576*8192),(S_WO,40,576*8192),(S_M0,8,9216),(S_DBG,96,256),
            (S_X,0,2048*1152),(S_WG,64,576*9216),(S_WU,72,576*9216),(S_WD,80,4608*1152),(S_OUT,88,2048*1152)]
    for b,k,sz in srds: a(f"s_load_dwordx2 s[{b}:{b+1}], s[0:1], {k}")
    for b,k,sz in srds: a(f"s_mov_b32 s{b+2}, {sz}\ns_mov_b32 s{b+3}, 0x20000")
    a(f"""
    s_getreg_b32 s{sXCC}, hwreg(HW_REG_XCC_ID, 0, 4)
    v_lshrrev_b32 v1, 6, v0
    s_nop 0
    v_readfirstlane_b32 s{par.sW}, v1
    s_waitcnt lgkmcnt(0)
    """)
    if opt.get("timing"): a("s_memrealtime s[4:5]")
    sel = opt.get("recsel", "xcc")
    a(f"""
    s_and_b32 s{t1}, s2, 7
    s_lshr_b32 s{t0}, s2, 3
    s_mul_i32 s{t0}, s{t0}, 7
    s_add_u32 s{t0}, s{t0}, s{t1}
    s_sub_u32 s{t0}, s{t0}, 2
    s_cmp_eq_u32 s{t1}, 0
    s_cbranch_scc1 L_noln
    s_cmp_ge_u32 s{t0}, 128
    s_cbranch_scc1 L_noln
    s_mov_b32 s86, s{t0}
    """)
    ln_task(a)
    if opt.get("g1t"): a("s_memrealtime s[90:91]")
    a(f"s_mov_b32 s{t1}, {DB_INIT}"); wait_ge_wg(a, DBG, f"s{t1}", 1, "init", sleep=1)
    if opt.get("g1t"): a("s_memrealtime s[92:93]")
    a(f"s_lshr_b32 s{t0}, s86, 4\ns_lshl_b32 s{t0}, s{t0}, 7\ns_add_u32 s{t0}, s{t0}, {WS_FLAGS+FL_LN}")
    signal(a, t0, "ln")
    if opt.get("g1t"):
        a(f"""
        s_memrealtime s[94:95]
        s_waitcnt lgkmcnt(0)
        v_mov_b32 v10, s90
        v_mov_b32 v11, s92
        v_mov_b32 v12, s94
        v_mov_b32 v13, s86
        s_lshl_b32 s{t0}, s2, 4
        s_add_u32 s{t0}, s{t0}, {WS_STAMP+0x18000}
        v_mov_b32 v14, 0
        s_mov_b64 exec, 1
        buffer_store_dwordx4 v[10:13], v14, {WS}, s{t0} offen
        s_mov_b64 exec, -1
        """)
    a.label("L_noln")
    a(f"""
    s_cmp_lg_u32 s2, 1
    s_cbranch_scc1 L_noinit
    v_lshlrev_b32 v1, 4, v0
    v_mov_b64 v[4:5], 0
    v_mov_b64 v[6:7], 0
    """)
    for i in range(FL_CNT_BYTES//4096):
        a(f"s_mov_b32 s{t0}, {WS_FLAGS+FL_CNT+i*4096}\nbuffer_store_dwordx4 v[4:7], v1, {WS}, s{t0} offen sc1")
    a(f"""
    s_waitcnt vmcnt(0)
    s_barrier
    v_mov_b32 v1, 1
    v_mov_b32 v2, 0
    s_mov_b64 exec, 1
    buffer_store_dword v1, v2, {DBG}, 0 offen offset:{DB_INIT} sc1
    s_mov_b64 exec, -1
L_noinit:
    s_lshr_b32 s{sH}, s2, 3
    """)
    if sel == "xcc":
        a(f"s_cmp_eq_u32 s{sXCC}, 0\ns_cbranch_scc1 L_rec")
    elif sel == "low":
        a(f"s_cmp_lt_u32 s2, 32\ns_cbranch_scc1 L_rec")
    a("s_branch L_par")
    a.label("L_rec")
    a("s_mov_b32 s3, 0")
    a.label("L_rec2")
    ro = dict(kvcheck=1, claim=1); ro.update(opt.get("rec", {}))
    rec_role(a, False, ro)
    if ro.get("steptime"):
        a(f"""
        s_lshl_b32 s{t0}, s{sH}, 9
        s_add_u32 s{t0}, s{t0}, {WS_STAMP+32768}
        v_lshrrev_b32 v10, 1, v0
        buffer_store_dwordx2 v[254:255], v10, {WS}, s{t0} offen
        """)
    a("s_branch L_fin")
    a.label("L_par")
    a(f"""
    s_add_u32 s{sQ}, s{sXCC}, 6
    s_mul_hi_u32 s{t0}, s{sQ}, {(2**32+6)//7}
    s_mul_i32 s{t0}, s{t0}, 7
    s_sub_u32 s{sQ}, s{sQ}, s{t0}          ; queue = (xcc + 6) % 7
    s_lshl_b32 s86, s{sQ}, 2
    """)
    wg_atomic(a, DB_G1Q, 87, "g1q0", soff="s86")
    a(f"s_mov_b32 s{t1}, {DB_INIT}"); wait_ge_wg(a, DBG, f"s{t1}", 1, "init2", sleep=1)
    par.G1T['on'] = bool(opt.get("g1t"))
    if opt.get("g1t"):
        a("s_memrealtime s[98:99]\ns_waitcnt lgkmcnt(0)\ns_mov_b32 s101, s98\ns_sub_u32 s94, s98, s4")
        for i in range(6): a(f"s_mov_b32 s{88+i}, 0")
        a("s_mov_b32 s95, 0")
    a(f"s_mov_b32 s{t2}, s87")
    gemm1_role(a, opt)
    a.label("L_g1done")
    if opt.get("g1t"):
        for i in range(8): a(f"v_mov_b32 v{20+i}, s{88+i}")
        a(f"""
        s_lshl_b32 s{t0}, s2, 5
        s_add_u32 s{t0}, s{t0}, {WS_STAMP+16384}
        v_mov_b32 v14, 0
        s_mov_b64 exec, 1
        buffer_store_dwordx4 v[20:23], v14, {WS}, s{t0} offen
        buffer_store_dwordx4 v[24:27], v14, {WS}, s{t0} offen offset:16
        s_mov_b64 exec, -1
        """)
    wg_atomic(a, DB_ROLE, t0, "peek", inc=0)
    a(f"""
    s_cmp_eq_u32 s{t0}, -1
    s_cbranch_scc1 L_p23
    s_ff0_i32_b32 s{sH}, s{t0}
    s_mov_b32 s3, 1
    s_branch L_rec2
    """)
    a.label("L_p23")
    a(f"""
    s_add_u32 s{sQ}, s{sXCC}, 6
    s_mul_hi_u32 s{t0}, s{sQ}, {(2**32+6)//7}
    s_mul_i32 s{t0}, s{t0}, 7
    s_sub_u32 s{sQ}, s{sQ}, s{t0}
L_p23q:
    s_lshl_b32 s86, s{sQ}, 2
    """)
    wg_atomic(a, DB_P23, t1, "p23", soff="s86")
    a(f"s_cmp_lt_u32 s{t1}, 31\ns_cbranch_scc1 L_p23go")
    steal(a, DB_P23, 31, "p23", t3)
    a(f"""
    s_cmp_eq_u32 s{t3}, 0
    s_cbranch_scc1 L_fin
    s_ff1_i32_b32 s{sQ}, s{t3}
    s_branch L_p23q
L_p23go:
    s_mul_i32 s{t0}, s{sQ}, 31
    s_add_u32 s{t0}, s{t0}, s{t1}
    s_cmp_ge_u32 s{t0}, 216
    s_cbranch_scc1 L_p23q
    """)
    par.TIM['on'] = bool(opt.get("timing"))
    p23_role(a)
    if opt.get("timing"):
        a("s_waitcnt lgkmcnt(0)")
        for i in range(6): a(f"v_mov_b32 v{20+i}, s{88+2*i}")
        a(f"""
        v_mov_b32 v26, s72
        v_mov_b32 v27, s73
        s_lshl_b32 s{t0}, s2, 5
        s_add_u32 s{t0}, s{t0}, {WS_STAMP+4096}
        v_mov_b32 v14, 0
        s_mov_b64 exec, 1
        buffer_store_dwordx4 v[20:23], v14, {WS}, s{t0} offen
        buffer_store_dwordx4 v[24:27], v14, {WS}, s{t0} offen offset:16
        s_mov_b64 exec, -1
        """)
    a.label("L_fin")
    if opt.get("timing"):
        a(f"""
        s_memrealtime s[6:7]
        s_waitcnt lgkmcnt(0)
        v_mov_b32 v10, s4
        v_mov_b32 v11, s6
        v_mov_b32 v12, s96
        v_mov_b32 v13, s{sXCC}
        v_mov_b32 v15, s36
        v_mov_b32 v16, s38
        s_lshl_b32 s{t0}, s2, 3
        s_add_u32 s{t0}, s{t0}, {WS_STAMP+65536}
        v_mov_b32 v14, 0
        s_mov_b64 exec, 1
        buffer_store_dword v15, v14, {WS}, s{t0} offen
        buffer_store_dword v16, v14, {WS}, s{t0} offen offset:4
        s_lshl_b32 s{t0}, s2, 4
        s_add_u32 s{t0}, s{t0}, {WS_STAMP}
        v_mov_b32 v14, 0
        s_mov_b64 exec, 1
        buffer_store_dwordx4 v[10:13], v14, {WS}, s{t0} offen
        """)
    a("s_waitcnt vmcnt(0)")
    a.label("L_end")
    lines = check_seq(a.lines, fix=True)
    body = "\n".join(l.split(";")[0].rstrip().replace(", ", ",") for l in lines if not l.startswith("; SP"))
    hdr = open("cdna_kernels/"+NAME+".s.ref").read().split("; Override launch")[0]
    return hdr + "; @launch grid=(256,1,1) block=(256,1,1) lds=163840\n" + '.amdgcn_target "amdgcn-amd-amdhsa--gfx950"\n' + kernel_text(NAME+"_kernel", body, vgpr=512, sgpr=102, accum=256)

if __name__ == "__main__":
    out = sys.argv[1]
    opt = eval(sys.argv[2]) if len(sys.argv) > 2 else {}
    src = generate(opt)
    if out == "final":
        open("cdna_kernels/"+NAME+".s","w").write(src); print("written", len(src), "bytes")
    else:
        from cdna_launch import with_harness_metadata
        import subprocess
        open(out+".s","w").write(src)
        open(out+".harness.s","w").write(with_harness_metadata(src, NAME+"_kernel", 14, launch_lists=True))
        r = subprocess.run(["clang","-x","assembler","-target","amdgcn-amd-amdhsa","-mcpu=gfx950",out+".harness.s","-o",out+".co"],capture_output=True,text=True)
        print(r.stderr[:3000] if r.returncode else f"ok {len(src)} bytes")
```

```python
from emit import *
from layout import *
import struct as _s

class Q:
    def __init__(s, a, name, mx): s.a=a; s.name=name; s.mx=mx; s.q=[]
    def add(s, tag): s.q.append(tag)
    def wait(s, tag):
        if tag not in s.q: return
        i = max(k for k,t in enumerate(s.q) if t==tag)
        n = len(s.q)-1-i
        n = min(n, s.mx)
        s.a(f"s_waitcnt {s.name}({n})")
        s.q = s.q[len(s.q)-n:] if n>0 else []
    def drain(s):
        s.a(f"s_waitcnt {s.name}(0)"); s.q=[]
    def clear(s): s.q=[]

def vr(b, n=4): return f"v[{b}:{b+n-1}]" if n>1 else f"v{b}"
def f2u(x): return _s.unpack("<I", _s.pack("<f", x))[0]

S_WS, S_WQ, S_WK, S_WV, S_WO, S_M0, S_DBG = 8,12,16,20,24,28,32
def srd(b): return f"s[{b}:{b+3}]"
sW, sH, sXCC, sSTEP = 60,61,62,63
sMEMR, sMEMW, sMEMA, sPARTW, sPARTX = 64,65,66,67,68
sTAG = 59
sKX, sVX, sKM, sVM, sRED, sBUD, sT0, sT1, sT2, sHC = 69,70,71,72,73,74,75,76,77,78
sFLG = 79
M_H0 = 80
sSW, sSMW, sOW, sC = 84, 85, 86, 87
sT3, sRM, sT4, sT5 = 88, 83, 82, 89
sL0 = 98
sFm, sKVR, sPF = 94, 91, 58
sSTO = 90
MH0 = f"s[{M_H0}:{M_H0+1}]"
vA,vIdx,vR0,vR1,vW,vP,vF0,vRs,vF1,vQ = 0,1,2,3,4,5,6,7,8,9
vRl = vP
vAp = vA
vS, vT = 10, 11
AQ0,AQ1,AK0,AK1 = 12,16,20,24
A0,A1,A2,A3 = 28,32,36,40
L = 44
KX, VX, SEL = 60, 68, 76
X_OFF, SEL_OFF, SM_OFF, RSEL_OFF, SX_OFF, RES_OFF = 0, 9216, 10240, 11264, 12288, 16384

def frag_regs():
    pool = [f"a[{8*i}:{8*i+7}]" for i in range(32)] + [f"v[{80+8*i}:{80+8*i+7}]" for i in range(22)]
    names = []
    for p in range(8): names += [("q",p,0),("q",p,1)]
    for p in (0,2,4,6,8): names += [("k",p,0),("k",p,1)]
    for p in range(2,9): names += [("v",p,0),("v",p,1)]
    for c in range(7): names += [("o",c,0),("o",c,1)]
    assert len(names)==54
    return dict(zip(names,pool))
FR = frag_regs()
def sub(reg, off, n):
    k=reg[0]; b=int(reg[2:reg.index(":")]); return f"{k}[{b+off}:{b+off+n-1}]"

CHUNKS = [("q",i) for i in range(8)] + [("k",i) for i in (0,2,4,6,8)] + [("v",i) for i in range(2,9)] + [("o",i) for i in range(7)] \
       + [("q",8),("v",0),("v",1),("k",1),("k",3),("k",5),("k",7),("o",7),("o",8)]
assert len(CHUNKS)==36
SLOT_Q8, SLOT_V0, SLOT_O7, SLOT_O8 = 0,1,7,8

def rec_setup(a):
    a(f"""
    v_lshrrev_b32 v11, 4, v{vA}           ; lane
    s_mov_b32 s{M_H0}, 0x33333333
    s_mov_b32 s{M_H0+1}, 0x33333333
    v_mov_b32 v12, 0xeeee
    v_mov_b32 v13, 0x4444
    v_cndmask_b32 v{vIdx}, v12, v13, {MH0}
    s_lshl_b32 s{sT0}, s{sW}, 12
    s_add_u32 s{sT0}, s{sT0}, {RES_OFF}
    v_add_u32 v{vR0}, s{sT0}, v{vA}
    s_lshl_b32 s{sT0}, s{sW}, 14
    s_add_u32 s{sT0}, s{sT0}, {65536-RES_OFF}
    v_add_u32 v{vR1}, s{sT0}, v{vR0}
    v_bfe_u32 v12, v11, 2, 2
    v_and_b32 v13, 1, v11
    v_lshl_add_u32 v14, v12, 1, v13
    s_lshl_b32 s{sT0}, s{sW}, 11
    v_add_u32 v{vW}, s{sT0}, v{vA}
    s_lshl_b32 s{sT0}, s{sW}, 8
    s_add_u32 s{sT0}, s{sT0}, 8192
    v_lshlrev_b32 v12, 2, v11
    v_add_u32 v{vQ}, s{sT0}, v12
    v_and_b32 v12, 31, v11
    v_lshlrev_b32 v12, 6, v12
    v_lshrrev_b32 v13, 5, v11
    v_lshl_add_u32 v{vF0}, v13, 24, v12
    v_bfe_u32 v12, v11, 3, 1
    v_lshrrev_b32 v13, 4, v11
    v_lshl_add_u32 v12, v12, 4, v13
    v_mul_u32_u24 v12, 9216, v12
    v_and_b32 v13, 7, v11
    v_lshl_add_u32 v{vRl}, v13, 4, v12
    v_bfe_u32 v12, v11, 1, 2
    v_lshlrev_b32 v12, 5, v12
    v_and_b32 v13, 1, v11
    v_lshl_add_u32 v12, v13, 3, v12
    v_bfe_u32 v13, v11, 5, 1
    v_lshl_add_u32 v12, v13, 4, v12
    v_bfe_u32 v13, v11, 4, 1
    v_lshl_add_u32 v12, v13, 2, v12
    v_mov_b32 v13, 0x7ff00000
    v_bfe_u32 v16, v11, 3, 1
    v_cmp_eq_u32 vcc, 0, v16
    s_nop 1
    v_cndmask_b32 v{vRs}, v13, v12, vcc
    s_mul_i32 s{sHC}, s{sH}, 9216
    s_sub_u32 s{sHC}, s{sHC}, 8192
    s_mul_i32 s{sT0}, s{sW}, 40
    s_add_u32 s{sRED}, s{sT0}, s{sH}
    s_cmp_lt_u32 s{sW}, 2
    s_cbranch_scc1 Lr_red_done
    s_mov_b32 s{sRED}, -1
    s_cmp_lg_u32 s{sW}, 2
    s_cbranch_scc1 Lr_red_done
    s_cmp_ge_u32 s{sH}, 8
    s_cbranch_scc1 Lr_red_done
    s_add_u32 s{sRED}, s{sH}, 32
Lr_red_done:
    s_lshl_b32 s{sRM}, s{sRED}, 7
    s_cmp_eq_u32 s{sRED}, -1
    s_cselect_b32 s{sRM}, 0x40000000, s{sRM}
    s_lshl_b32 s{sSW}, s{sW}, 10
    s_add_u32 s{sSW}, s{sSW}, {SX_OFF}
    s_lshl_b32 s{sSMW}, s{sW}, 8
    s_add_u32 s{sSMW}, s{sSMW}, {SM_OFF}
    s_lshr_b32 s{sOW}, s{sW}, 1
    s_lshl_b32 s{sOW}, s{sOW}, 13
    s_and_b32 s{sT0}, s{sW}, 1
    s_lshl_b32 s{sT0}, s{sT0}, 3
    s_add_u32 s{sOW}, s{sOW}, s{sT0}
    s_lshl_b32 s{sT0}, s{sH}, 13
    s_lshl_b32 s{sT1}, s{sW}, 11
    s_add_u32 s{sT0}, s{sT0}, s{sT1}
    s_add_u32 s{sKX}, s{sT0}, {WS_KX}
    s_add_u32 s{sVX}, s{sT0}, {WS_VX}
    s_lshr_b32 s{sT0}, s{sT0}, 1
    s_add_u32 s{sKM}, s{sT0}, {WS_KM}
    s_lshr_b32 s{sT0}, s{sT0}, 1
    s_add_u32 s{sVM}, s{sT0}, {WS_VM}
    s_lshl_b32 s{sFLG}, s{sH}, 7
    s_add_u32 s{sFLG}, s{sFLG}, {WS_FLAGS+FL_KVM}
    s_mov_b32 s{sMEMR}, {WS_MEMX}
    s_mov_b32 s{sMEMW}, {WS_MEMX+MEM_SLOT}
    s_mov_b32 s{sMEMA}, {WS_MEMX+3*MEM_SLOT}
    s_mov_b32 s{sPARTW}, {WS_PART}
    s_mov_b32 s{sPARTX}, {WS_PART+PART_SLOT}
    s_mov_b32 s{sTAG}, 1
    s_mov_b32 s{sKVR}, 0
    s_mov_b32 s{sBUD}, 0x100000
    s_mov_b32 s{sSTEP}, 0
    s_mov_b32 s{sC}, {f2u(128**-0.5 * 1.4426950408889634):#x}
    """)
    a(f"""
    v_lshrrev_b32 v12, 1, v14
    v_lshrrev_b32 v13, 4, v11
    v_and_b32 v16, 1, v14
    v_lshlrev_b32 v16, 4, v16
    v_mov_b32 v17, 0x3f80
    v_lshlrev_b32 v16, v16, v17
    v_cmp_eq_u32 vcc, v12, v13
    v_mov_b32 v21, 0
    v_mov_b32 v22, 0
    v_cndmask_b32 v20, 0, v16, vcc
    v_mov_b32 v23, v20
    ds_write_b128 v{vA}, v[20:23] offset:{SEL_OFF}
    v_bfe_u32 v12, v11, 3, 1
    v_lshlrev_b32 v12, 4, v12
    v_lshlrev_b32 v16, v12, v17
    v_bfe_u32 v12, v11, 2, 1              ; a
    v_and_b32 v13, 3, v11                 ; r
    v_lshl_add_u32 v12, v12, 1, v13
    v_and_b32 v13, 2, v13
    v_lshl_add_u32 v12, v13, 2, v12
    v_cmp_eq_u32 vcc, 0, v12
    s_nop 1
    v_cndmask_b32 v24, 0, v16, vcc
    v_cmp_eq_u32 vcc, 1, v12
    s_nop 1
    v_cndmask_b32 v25, 0, v16, vcc
    v_cmp_eq_u32 vcc, 2, v12
    s_nop 1
    v_cndmask_b32 v26, 0, v16, vcc
    v_cmp_eq_u32 vcc, 3, v12
    s_nop 1
    v_cndmask_b32 v27, 0, v16, vcc
    ds_write_b128 v{vA}, v[24:27] offset:{RSEL_OFF}
    s_cmp_eq_u32 s{sW}, 3
    s_cselect_b64 s[{sFm}:{sFm+1}], 1, 0
    """)

def rec_mem0_load(a):
    a(f"""
    s_cmp_lg_u32 s{sH}, 0
    s_cbranch_scc1 Lr_nomem0a
    v_bfe_u32 v17, v11, 2, 2
    v_and_b32 v18, 1, v11
    v_lshl_add_u32 v17, v17, 1, v18
    v_mul_u32_u24 v17, 1152, v17
    v_bfe_u32 v18, v11, 1, 1
    v_lshl_add_u32 v17, v18, 4, v17
    v_lshrrev_b32 v18, 4, v11
    v_lshl_add_u32 v17, v18, 5, v17
    s_lshl_b32 s{sT0}, s{sW}, 8
    buffer_load_dwordx4 v[68:71], v17, {srd(S_M0)}, s{sT0} offen
    buffer_load_dwordx4 v[72:75], v17, {srd(S_M0)}, s{sT0} offen offset:128
    buffer_load_dwordx4 v[76:79], v17, {srd(S_M0)}, 0 offen offset:1024
Lr_nomem0a:
    """)

def rec_init_exchange(a):
    a(f"""
    s_cmp_lg_u32 s{sH}, 0
    s_cbranch_scc1 Lr_nomem0
    s_lshl_b32 s{sT0}, s{sW}, 11
    s_add_u32 s{sT0}, s{sT0}, s{sMEMR}
    s_add_u32 s{sT1}, s{sMEMR}, 8192
    s_waitcnt vmcnt(36)
    buffer_store_dwordx4 v[68:71], v{vA}, {srd(S_WS)}, s{sT0} offen sc1
    buffer_store_dwordx4 v[72:75], v{vA}, {srd(S_WS)}, s{sT0} offen offset:1024 sc1
    buffer_store_dwordx4 v[76:79], v{vA}, {srd(S_WS)}, s{sT1} offen sc1
Lr_nomem0:
    v_mov_b32 v12, -1
    v_mov_b32 v13, -1
    v_mov_b32 v14, -1
    v_mov_b32 v15, -1
    v_mov_b64 v[16:17], 0
    v_mov_b64 v[18:19], 0
    s_mov_b64 exec, s[{sFm}:{sFm+1}]
    buffer_store_dword v16, v{vA}, {srd(S_WS)}, s{sFLG} offen sc1
    s_mov_b64 exec, -1
    s_cmp_eq_u32 s{sRED}, -1
    s_cbranch_scc1 Lr_noarm
    """)
    for sl in (sPARTW, sPARTX):
        for m in range(4):
            a(f"s_add_u32 s{sT0}, s{sRM}, s{sl}")
            a(f"s_add_u32 s{sT0}, s{sT0}, {m*36864}")
            a(f"buffer_store_dwordx4 v[16:19], v{vRl}, {srd(S_WS)}, s{sT0} offen sc1")
    a(f"""
    s_add_u32 s{sT0}, s{sRM}, s{sMEMW}
    s_add_u32 s{sT1}, s{sT0}, {MEM_SLOT}
    s_add_u32 s{sT2}, s{sT0}, {2*MEM_SLOT}
    buffer_store_dword v12, v{vRs}, {srd(S_WS)}, s{sT0} offen sc1
    buffer_store_dword v12, v{vRs}, {srd(S_WS)}, s{sT1} offen sc1
    buffer_store_dword v12, v{vRs}, {srd(S_WS)}, s{sT2} offen sc1
Lr_noarm:
    """)

NINIT = 0
def rec_prologue_wave(a, w, opt):
    vm = Q(a,"vmcnt",63); lg = Q(a,"lgkmcnt",15)
    vD, vDo, vTq0, vTq1, vTo, vTmp = 66, 67, 60, 61, 62, 63
    a(f"""
    v_lshrrev_b32 v12, 4, v{vA}           ; lane
    v_lshrrev_b32 v13, 4, v12             ; i>>4
    v_and_b32 v14, 1, v13
    v_or_b32 v14, {w<<1}, v14             ; f
    v_lshlrev_b32 v14, 1, v14
    v_and_b32 v15, 15, v12
    v_xor_b32 v15, v15, v14
    v_lshlrev_b32 v15, 4, v15
    v_add_u32 v13, {4*w}, v13
    v_lshl_add_u32 v{vD}, v13, 13, v15
    v_lshrrev_b32 v13, 3, v12
    v_mul_u32_u24 v13, 1152, v13
    v_and_b32 v15, 7, v12
    v_xor_b32 v15, {w<<1}, v15
    v_lshl_add_u32 v{vDo}, v15, 4, v13
    v_lshrrev_b32 v13, 4, v12             ; gb
    v_bfe_u32 v14, v12, 2, 2              ; r
    v_and_b32 v15, 3, v12                 ; c
    v_lshrrev_b32 v16, 1, v13
    v_and_b32 v17, 1, v13
    v_and_b32 v18, 1, v14
    v_lshrrev_b32 v19, 1, v14
    v_lshlrev_b32 v20, 4, v16
    v_lshl_add_u32 v20, v17, 2, v20
    v_add_u32 v20, v20, v18
    v_lshl_add_u32 v20, v19, 3, v20
    v_lshl_add_u32 v21, v17, 1, v18
    v_lshl_add_u32 v21, v19, 2, v21
    v_lshlrev_b32 v20, 8, v20
    v_lshl_add_u32 v20, v15, 3, v20
    v_xor_b32 v22, {2*w}, v21
    v_lshl_add_u32 v{vTq0}, v22, 5, v20
    v_xor_b32 v22, {2*w+1}, v21
    v_lshl_add_u32 v{vTq1}, v22, 5, v20
    v_lshlrev_b32 v20, 5, v17
    v_lshl_add_u32 v20, v16, 2, v20
    v_add_u32 v20, v20, v18
    v_lshl_add_u32 v20, v19, 4, v20
    v_lshlrev_b32 v20, 7, v20
    v_lshl_add_u32 v20, v15, 3, v20
    v_lshl_add_u32 v21, v17, 1, v19
    v_xor_b32 v21, {w}, v21
    v_lshl_add_u32 v{vTo}, v21, 5, v20
    s_lshl_b32 s{sT1}, s{sH}, 8
    s_mul_i32 s{sT2}, s{sH}, 147456
    """)
    def issue(n):
        mat, idx = CHUNKS[n]; slot = n % 9
        base = RES_OFF + slot*16384
        if mat in "qkv":
            S = {"q":S_WQ,"k":S_WK,"v":S_WV}[mat]
            for q in range(4):
                a(f"s_mov_b32 m0, {base + (4*q+w)*1024}")
                a(f"s_add_u32 s{sT0}, s{sT1}, {idx*64*8192 + q*16*8192}")
                a(f"buffer_load_dwordx4 v{vD}, {srd(S)}, s{sT0} offen {opt.get('wflag','')} lds")
                vm.add(n)
        else:
            for ins in (2*w, 2*w+1, 8+2*w, 9+2*w):
                a(f"s_mov_b32 m0, {base + ins*1024}")
                a(f"s_add_u32 s{sT0}, s{sT2}, {ins*8*1152 + idx*128}")
                a(f"buffer_load_dwordx4 v{vDo}, {srd(S_WO)}, s{sT0} offen {opt.get('wflag','')} lds")
                vm.add(n)
    def dest(n, f):
        mat, idx = CHUNKS[n]
        if n >= 27:
            b = 12 + (n&1)*16 + f*8
            return f"v[{b}:{b+7}]"
        if mat in "qk" and idx < 8: idx = idx ^ (2*w)
        return FR[(mat, idx, f)]
    def reads(n):
        mat, idx = CHUNKS[n]; slot = n % 9
        base = RES_OFF + slot*16384
        for f in range(2):
            d = dest(n,f)
            if mat in "qkv":
                a(f"v_add_u32 v{vTmp}, {base}, v{vTq0 if f==0 else vTq1}")
                for jg in range(4):
                    off = (jg&1)*512 + (jg>>1)*8192
                    a(f"ds_read_b64_tr_b16 {sub(d,2*jg,2)}, v{vTmp} offset:{off}"); lg.add(("r",n))
            else:
                a(f"v_add_u32 v{vTmp}, {base}, v{vTo}")
                for jg in range(4):
                    off = f*8192 + (jg>>1)*1024 + (jg&1)*256
                    a(f"ds_read_b64_tr_b16 {sub(d,2*jg,2)}, v{vTmp} offset:{off}"); lg.add(("r",n))
    def writeback(n):
        slot = n % 9
        a(f"v_add_u32 v{vTmp}, {slot*16384}, v{vR0}")
        for f in range(2):
            d = dest(n,f)
            for hf in range(2):
                a(f"ds_write_b128 v{vTmp}, {sub(d,4*hf,4)} offset:{(2*f+hf)*1024}"); lg.add(("w",n))
    PF = opt.get("wflag", "")
    for n in range(9): issue(n)
    a(f"s_branch Lr_mid")
    a.label(f"Lr_pro2_{w}")
    a(f"s_lshl_b32 s{sT1}, s{sH}, 8\ns_mul_i32 s{sT2}, s{sH}, 147456")
    vm.q = vm.q + ["init"]*NINIT
    for n in range(37):
        if n < 36: vm.wait(n)
        lg.drain()
        a("s_barrier")
        if n == 9 and w == 0:
            a(f"""
            s_add_u32 s{sT0}, s{sXCC}, 1
            v_mov_b32 v64, s{sT0}
            v_mov_b32 v65, s{sH}
            s_mov_b64 exec, 1
            buffer_store_byte v64, v65, {srd(S_DBG)}, 0 offen offset:{DB_TAB} sc1
            s_mov_b64 exec, -1
            """); vm.add("sig")
        if n >= 1 and n-1+9 < 36: issue(n-1+9)
        if n == 29:
            a(f"""
            v_bfe_u32 v64, v{vA}, 4, 5
            buffer_load_ubyte v68, v64, {srd(S_DBG)}, 0 offen offset:{DB_TAB} sc1
            v_mov_b32 v64, 0
            buffer_load_dword v69, v64, {srd(S_DBG)}, 0 offen offset:{DB_INIT} sc1
            """); vm.add("tab"); vm.add("tab")
        if n >= 1 and n-1 >= 27: writeback(n-1)
        if n < 36: reads(n)
    lg.drain()
    a("s_barrier")

def rec_loop(a, mode, stamps=False, opt=None):
    opt = opt or {}
    comp_only = opt.get("comp_only", False)
    st = "" if mode=="f" else " sc1"
    P = f"Lr{mode}_"
    vm = Q(a,"vmcnt",63); lg = Q(a,"lgkmcnt",15)
    WS = srd(S_WS)
    names = opt.get("st", ["top","gotB","bar1","k8","bar2","bx","ow","bar3","wo","gotA","pub"])
    def sp(name):
        a.lines.append(f"; SP{mode}0 {name}")
        if stamps and name in names:
            i = names.index(name)
            a(f"{'s_memrealtime' if opt.get('rt') else 's_memtime'} s[{36+2*i}:{37+2*i}]")
    def delay(n):
        while n >= 64:
            k_ = min(n//64, 8); a(f"s_sleep {k_}"); n -= 64*k_
        while n >= 4:
            k_ = min(n//4, 16); a(f"s_nop {k_-1}"); n -= 4*k_
    def smf(acc, A, B): a(f"v_smfmac_f32_16x16x64_bf16 {vr(acc)}, {vr(A)}, {B}, v{vIdx}")
    def ldsr(dst, addr, off, tag, n=4):
        op = {4:"ds_read_b128",2:"ds_read_b64",1:"ds_read_b32"}[n]
        a(f"{op} {vr(dst,n)}, v{addr} offset:{off}"); lg.add(tag)
    Lf = lambda f: f"v[{L+8*f}:{L+8*f+7}]"
    L2f = lambda f: f"v[{KX+8*f}:{KX+8*f+7}]"
    z2 = lambda r: a(f"v_mov_b64 v[{r}:{r+1}], 0")
    cvt = lambda d,x,y: a(f"v_cvt_pk_bf16_f32 v{d}, v{x}, v{y}")
    add = lambda d,x,y: a(f"v_add_f32 v{d}, v{x}, v{y}")
    mf16 = lambda d,A,B: a(f"v_mfma_f32_16x16x16_bf16 {vr(d)}, {vr(A,2)}, {vr(B,2)}, 0")
    mf32 = lambda d,A,B,C=None: a(f"v_mfma_f32_16x16x32_bf16 {vr(d)}, {vr(A)}, {vr(B)}, {'0' if C is None else vr(C)}")
    QP = "quad_perm:[2,3,0,1] row_mask:0xf bank_mask:0xf"
    cnt = lambda inc: a(f"s_add_u32 s58, s58, {inc}") if stamps else None
    def rotate():
        a(f"""
        s_mov_b32 s{sMEMA}, s{sMEMR}
        s_mov_b32 s{sMEMR}, s{sMEMW}
        s_add_u32 s{sMEMW}, s{sMEMW}, {MEM_SLOT}
        s_and_b32 s{sMEMW}, s{sMEMW}, 0xffff
        s_or_b32 s{sMEMW}, s{sMEMW}, {WS_MEMX}
        s_mov_b32 s{sT3}, s{sPARTW}
        s_mov_b32 s{sPARTW}, s{sPARTX}
        s_mov_b32 s{sPARTX}, s{sT3}
        s_mov_b32 s{sT5}, s{sTAG}
        s_add_u32 s{sSTEP}, s{sSTEP}, 1
        s_bfe_u32 s{sTAG}, s{sSTEP}, 0x10001
        s_xor_b32 s{sTAG}, s{sTAG}, 1
        """)
    def prep():
        a(f"v_xor_b32 v{vT}, {1<<14}, v{vR1}")
        for p in range(4): ldsr(L+4*p, vR1, p*1024, "prep")
        for p in range(4): ldsr(KX+4*p, vT, p*1024, "prep")
        ldsr(SEL, vA, SEL_OFF, "prep")
        for r in range(0,16,2): z2(AQ0+r)
    def issueB():
        a(f"""
        buffer_load_dwordx4 {vr(A0)}, v{vW}, {WS}, s{sMEMR} offen sc1
        buffer_load_dwordx4 {vr(A1)}, v{vW}, {WS}, s{sMEMR} offen offset:1024 sc1
        buffer_load_dword v{vF1}, v{vQ}, {WS}, s{sMEMR} offen sc1
        """)
    def dump2():
        if stamps:
            a("s_waitcnt lgkmcnt(0)")
            a(f"s_sub_u32 m0, s{sSTEP}, 1")
            for i in range(len(names)): a(f"v_writelane_b32 v{244+i}, s{36+2*i}, m0")
            a(f"v_writelane_b32 v255, s58, m0")
            a("s_mov_b32 s58, 0")
    prep()
    if stamps: a("s_mov_b32 s58, 0")
    a.label(P+"pollB")
    if opt.get("kvcheck"):
        a(f"s_add_u32 s{sT0}, s{sSTEP}, 1\ns_mov_b32 s{sPF}, 0\ns_cmp_ge_u32 s{sT0}, s{sKVR}\ns_cbranch_scc1 {P}kvwait")
        a.label(P+"kvok")
    twoB = opt.get("gapB", 0)
    twoA = opt.get("gapA", 0)
    issueB()
    if twoB:
        delay(twoB); issueB()
    a.label(P+"top")
    sp("top")
    B0,B1,B2,B3 = A0,A1,A2,A3
    def q(pos,f,A): smf((AQ0,AQ1)[f], A, Lf(f) if pos==8 else FR[("q",pos,f)])
    def k(pos,f,A): smf((AK0,AK1)[f], A, L2f(f) if pos==3 else (Lf(f) if pos in (1,5,7) else FR[("k",pos,f)]))
    AV0, AV1 = B3, B1
    def v(kap,f,A): smf((AV0,AV1)[f], A, FR[("v",kap,f)] if kap>=2 else Lf(f))
    xr = lambda j: a(f"v_xor_b32 v{vT}, {j*2048}, v{vW}")
    xq = lambda j: a(f"v_xor_b32 v{vS}, {j<<14}, v{vR1}")
    vm.clear(); lg.q=["x"]*9
    a("s_waitcnt vmcnt(2)")
    q(0,0,B0); a(f"v_max3_u32 v{vS}, v{A0}, v{A0+1}, v{A0+2}")
    a("s_waitcnt vmcnt(1)")
    q(0,1,B0); a(f"v_max3_u32 v{vS}, v{vS}, v{A0+3}, v{A1}"); a(f"v_max3_u32 v{vS}, v{vS}, v{A1+1}, v{A1+2}")
    a("s_waitcnt vmcnt(0)")
    a(f"v_max3_u32 v{vS}, v{vS}, v{A1+3}, v{vF1}")
    a(f"v_cmp_eq_u32 vcc, -1, v{vS}")
    k(0,0,B0)
    a("s_nop 0" if comp_only else f"s_cbranch_vccnz {P}retryB")
    a.label(P+"gotB")
    if opt.get("steptime"):
        a(f"s_memrealtime s[92:93]\ns_memtime s[56:57]")
    sp("gotB")
    k(0,1,B0); a(f"ds_write_b128 v{vW}, {vr(B0)}"); a(f"v_xor_b32 v{vS}, 2048, v{vW}")
    q(1,0,B1); a(f"ds_write_b128 v{vW}, {vr(B1)} offset:1024"); xr(2)
    q(1,1,B1); a(f"ds_write_b32 v{vQ}, v{vF1}")
    lg.drain(); a("s_barrier")
    if opt.get("steptime"):
        a(f"s_mov_b32 m0, s{sSTEP}\nv_writelane_b32 v254, s92, m0\nv_writelane_b32 v255, s56, m0")
    sp("bar1")
    ldsr(B2, vS, 0, "p2")
    def pf():
        if opt.get("nopf"): return
        if opt.get("kvcheck"): a(f"s_or_b32 s{sPF}, s{sPF}, s{sT0}")
        a(f"buffer_load_dword v{vF1}, v{vF0}, {WS}, s{sPF if opt.get('kvcheck') else sT0} offen sc1"); vm.add("pf")
    k(1,0,B1); ldsr(B3, vS, 1024, "p3")
    k(1,1,B1); ldsr(B0, vA, 8192, "k8")
    lg.wait("p2")
    q(2,0,B2); ldsr(B1, vT, 0, "p4")
    q(2,1,B2); ldsr(L, vR0, 0, ("L",0))
    lg.wait("p3")
    q(3,0,B3); ldsr(L+4, vR0, 1024, ("L",0))
    q(3,1,B3); ldsr(L+8, vR0, 2048, ("L",1))
    k(2,0,B2); ldsr(L+12, vR0, 3072, ("L",1))
    k(2,1,B2); ldsr(B2, vT, 1024, "p5"); xr(3)
    k(3,0,B3); a(f"buffer_load_dwordx4 {vr(KX)}, v{vA}, {WS}, s{sKX} offen sc1"); vm.add("kx")
    k(3,1,B3); ldsr(B3, vT, 0, "p6"); xq(2)
    lg.wait(("L",1))
    q(8,0,B0); a(f"buffer_load_dwordx4 {vr(KX+4)}, v{vA}, {WS}, s{sKX} offen offset:1024 sc1"); vm.add("kx")
    q(8,1,B0); ldsr(L, vS, 0, ("L",0))
    q(4,0,B1); ldsr(L+4, vS, 1024, ("L",0))
    q(4,1,B1); ldsr(L+8, vS, 2048, ("L",1))
    lg.wait("p5")
    q(5,0,B2); ldsr(L+12, vS, 3072, ("L",1)); xq(3)
    q(5,1,B2); a(f"buffer_load_dwordx4 {vr(VX)}, v{vA}, {WS}, s{sVX} offen sc1"); vm.add("vx")
    k(4,0,B1); a(f"buffer_load_dwordx4 {vr(VX+4)}, v{vA}, {WS}, s{sVX} offen offset:1024 sc1"); vm.add("vx")
    k(4,1,B1); ldsr(B1, vT, 1024, "p7")
    lg.wait("p6")
    q(6,0,B3); a(f"s_add_u32 s{sKX}, s{sKX}, 0x40000\ns_add_u32 s{sVX}, s{sVX}, 0x40000")
    q(6,1,B3)
    a(f"s_mov_b32 s{sT0}, s{sKX}")
    pf()
    lg.wait(("L",1))
    k(5,0,B2); ldsr(L, vS, 0, ("L",0))
    lg.wait("p7")
    q(7,0,B1); ldsr(L+4, vS, 1024, ("L",0))
    q(7,1,B1); a(f"v_add_u32 v{vT}, s{sSW}, v{vA}")
    k(5,1,B2); ldsr(L+8, vS, 2048, ("L",1))
    k(6,0,B3); ldsr(L+12, vS, 3072, ("L",1))
    k(6,1,B3); a(f"v_lshrrev_b32 v{vS}, 2, v{vA}"); z2(AV0)
    a(f"v_mov_b32 v{AV0+2}, s{sSTEP}")
    k(8,0,B0); add(AQ0, AQ0, AQ0+2); add(AQ0+1, AQ0+1, AQ0+3)
    k(8,1,B0); add(AQ1, AQ1, AQ1+2); add(AQ1+1, AQ1+1, AQ1+3)
    lg.wait(("L",0))
    k(7,0,B1)
    if not opt.get("noflag"):
        a(f"s_mov_b64 exec, s[{sFm}:{sFm+1}]")
        a(f"buffer_store_dword v{AV0+2}, v{vA}, {WS}, s{sFLG} offen sc1"); vm.add("flag")
        a("s_mov_b64 exec, -1")
    cvt(AQ0+2, AQ0, AQ0+1); cvt(AQ0+3, AQ1, AQ1+1)
    lg.wait(("L",1))
    k(7,1,B1); ldsr(L, vR0, 16384, ("L",0)); z2(AV0+2)
    sp("k8")
    mf16(AQ1, AQ0+2, SEL); ldsr(L+4, vR0, 16384+1024, ("L",0)); z2(AV1)
    mf16(B2, AQ0+2, SEL+2); ldsr(L+8, vR0, 16384+2048, ("L",1)); z2(AV1+2)
    add(AK0, AK0, AK0+2); add(AK0+1, AK0+1, AK0+3)
    add(AK1, AK1, AK1+2); add(AK1+1, AK1+1, AK1+3)
    cvt(AK0+2, AK0, AK0+1); cvt(AK0+3, AK1, AK1+1)
    cvt(AQ0, AQ1, AQ1+1); cvt(AQ0+1, AQ1+2, AQ1+3)
    mf16(AK1, AK0+2, SEL); ldsr(L+12, vR0, 16384+3072, ("L",1))
    cvt(AQ0+2, B2, B2+1)
    mf16(SEL, AK0+2, SEL+2)
    cvt(AQ0+3, B2+2, B2+3)
    v(8,0,B0)
    vm.wait("kx")
    mf32(B2, KX, AQ0)
    mf32(AQ1, KX+4, AQ0)
    a(f"v_add_u32 v{KX+5}, s{sSMW}, v{vS}")
    cvt(AK0, AK1, AK1+1); cvt(AK0+1, AK1+2, AK1+3)
    cvt(AK0+2, SEL, SEL+1); cvt(AK0+3, SEL+2, SEL+3)
    v(8,1,B0); ldsr(SEL, vA, 0, "S4")
    mf32(AK1, AK0, AQ0); ldsr(B0, vA, 2*1024, "a0")
    for r in range(4): a(f"v_cndmask_b32 v{KX+r}, v{AQ1+r}, v{B2+r}, {MH0}")
    lg.wait("S4")
    v(0,0,SEL); a(f"ds_write_b128 v{vT}, {vr(KX)}"); lg.add("sw")
    a(f"v_cndmask_b32 v{KX+4}, v{AK1+1}, v{AK1}, {MH0}")
    v(0,1,SEL); a(f"ds_write_b32 v{KX+5}, v{KX+4}"); lg.add("sw")
    lg.wait("a0")
    v(2,0,B0); ldsr(B2, vA, 3*1024, "a2"); a(f"v_xor_b32 v{vT}, 1024, v{vT}")
    v(2,1,B0)
    if not opt.get("nokv"): a(f"buffer_store_dwordx4 {vr(AK0)}, v{vA}, {WS}, s{sKM} offen sc1"); vm.add("km")
    lg.wait("sw")
    a("s_barrier")
    sp("bar2")
    m, m2 = KX+6, KX+7
    D = AQ1
    ldsr(AQ0, vT, 0, ("sx",0)); a(f"v_xor_b32 v{vT}, 3072, v{vT}")
    lg.wait("a2")
    v(3,0,B2); ldsr(AQ1, vT, 0, ("sx",1)); a(f"v_xor_b32 v{vT}, 1024, v{vT}")
    v(3,1,B2); ldsr(AK0, vT, 0, ("sx",2))
    a(f"ds_read2st64_b32 {vr(AK1,2)}, v{vS} offset0:{SM_OFF//256} offset1:{SM_OFF//256+1}"); lg.add("sm")
    a(f"ds_read2st64_b32 {vr(AK1+2,2)}, v{vS} offset0:{SM_OFF//256+2} offset1:{SM_OFF//256+3}"); lg.add("sm")
    ldsr(SEL, vA, 4*1024, "S4"); ldsr(B0, vA, 5*1024, "a0"); ldsr(B2, vA, 6*1024, "a2")
    pk = lambda d,x,y: a(f"v_pk_add_f32 {vr(d,2)}, {vr(x,2)}, {vr(y,2)}")
    ONES = AK0
    lg.wait(("sx",0))
    pk(KX, KX, AQ0); pk(KX+2, KX+2, AQ0+2)
    lg.wait(("sx",2))
    pk(AQ1, AQ1, AK0); pk(AQ1+2, AQ1+2, AK0+2)
    lg.wait("sm")
    pk(AK1, AK1, AK1+2)
    pk(AQ0, KX, AQ1); pk(AQ0+2, KX+2, AQ1+2)
    add(KX, AK1, AK1+1)
    a(f"v_max3_f32 v{m}, v{AQ0}, v{AQ0+1}, v{AQ0+2}")
    a(f"v_max3_f32 v{m}, v{m}, v{AQ0+3}, v{KX}")
    lg.wait("S4")
    v(4,0,SEL); ldsr(L, vR0, 2*16384, ("L",0))
    a(f"v_max_f32_dpp v{m}, v{m}, v{m} {QP}")
    a(f"v_mov_b32 v{m2}, v{m}")
    v(4,1,SEL); ldsr(L+4, vR0, 2*16384+1024, ("L",0)); lg.wait("a0")
    a(f"v_permlane16_swap_b32 v{m}, v{m2}")
    a(f"v_max_f32 v{m}, v{m}, v{m2}")
    a(f"v_mov_b32 v{m2}, v{m}")
    v(5,0,B0); ldsr(SEL, vA, 7*1024, "S4")
    a(f"v_permlane32_swap_b32 v{m}, v{m2}")
    a(f"v_max_f32 v{m}, v{m}, v{m2}")
    v(5,1,B0); ldsr(L+8, vR0, 2*16384+2048, ("L",1)); lg.wait("a2")
    a(f"v_mul_f32 v{m}, s{sC}, v{m}")
    srcs = [AQ0,AQ0+1,AQ0+2,AQ0+3,KX]
    for s_ in srcs: a(f"v_fma_f32 v{s_}, v{s_}, s{sC}, -v{m}")
    v(6,0,B2); ldsr(L+12, vR0, 2*16384+3072, ("L",1))
    for s_ in srcs[:2]: a(f"v_exp_f32 v{s_}, v{s_}")
    v(6,1,B2); ldsr(B0, vA, 1*1024, "a0"); lg.wait("S4")
    for s_ in srcs[2:4]: a(f"v_exp_f32 v{s_}, v{s_}")
    v(7,0,SEL); a(f"s_mov_b64 vcc, {MH0}")
    c0,c1 = KX+2, KX+3
    BL, BH, BM, DL, ONE, ZR = AK0, AK1, AQ0, B2, SEL, KX+5
    a(f"v_exp_f32 v{KX}, v{KX}")
    cvt(c0, AQ0, AQ0+1)
    v(7,1,SEL); lg.wait("a0")
    cvt(c1, AQ0+2, AQ0+3)
    a(f"v_mov_b32 v{ZR}, 0")
    a(f"v_cndmask_b32 v{BL}, 0, v{c0}, {MH0}")
    a(f"v_cndmask_b32 v{BL+1}, 0, v{c1}, {MH0}")
    v(1,0,B0)
    a(f"v_cndmask_b32_dpp v{BH}, v{c0}, v{ZR}, vcc {QP}")
    a(f"v_cndmask_b32_dpp v{BH+1}, v{c1}, v{ZR}, vcc {QP}")
    a(f"v_cndmask_b32_dpp v{KX+1}, v{KX}, v{ZR}, vcc {QP}")
    v(1,1,B0); a(f"s_not_b64 vcc, vcc")
    sp("bx")
    a(f"v_cndmask_b32 v{BH+2}, v{c0}, 0, {MH0}")
    a(f"v_cndmask_b32 v{BH+3}, v{c1}, 0, {MH0}")
    a(f"v_cndmask_b32_dpp v{BL+2}, v{c0}, v{ZR}, vcc {QP}")
    a(f"v_cndmask_b32_dpp v{BL+3}, v{c1}, v{ZR}, vcc {QP}")
    vm.wait("vx")
    mf32(D, VX+4, BH)
    a(f"v_cndmask_b32_dpp v{KX+4}, v{KX}, v{ZR}, vcc {QP}")
    a(f"v_mov_b32 v{ONE}, 0x3f803f80")
    mf32(D, VX, BL, D)
    a(f"v_cndmask_b32 v{m}, 0, v{KX}, {MH0}")
    a(f"v_cndmask_b32 v{m2}, v{KX}, 0, {MH0}")
    a(f"v_mov_b32 v{ONE+1}, v{ONE}")
    add(AV0, AV0, AV0+2); add(AV0+1, AV0+1, AV0+3)
    a(f"v_mov_b64 {vr(ONE+2,2)}, {vr(ONE,2)}")
    add(AV1, AV1, AV1+2); add(AV1+1, AV1+1, AV1+3)
    cvt(BM, m, KX+4); cvt(BM+1, KX+1, m2)
    mf32(DL, ONE, BH)
    z2(BM+2)
    cvt(KX, AV0, AV0+1)
    mf32(DL, ONE, BL, DL)
    cvt(KX+1, AV1, AV1+1)
    a(f"v_lshrrev_b32 v{vS}, 1, v{vA}")
    mf32(DL, ONE, BM, DL)
    a(f"v_add_u32 v{vT}, {7*16384}, v{vR0}")
    mf32(D, KX, BM, D)
    if not opt.get("nokv"): a(f"buffer_store_dwordx2 {vr(KX,2)}, v{vS}, {WS}, s{sVM} offen sc1"); vm.add("vm")
    a(f"""
    v_add_u32 v{vS}, s{sOW}, v{vA}
    s_cmp_eq_u32 s{sSTEP}, 63
    s_cbranch_scc1 {P}done
    """)
    z2(VX); z2(VX+2)
    a(f"v_rcp_f32 v{m}, v{DL}")
    z2(VX+4)
    for r in range(4): a(f"v_mul_f32 v{D+r}, v{D+r}, v{m}")
    cvt(KX+2, D, D+1); cvt(KX+3, D+2, D+3)
    a(f"ds_write_b64 v{vS}, {vr(KX+2,2)}"); lg.add("ow")
    sp("ow")
    z2(SEL); z2(SEL+2); z2(VX+6)
    for r in range(0,16,2): z2(AQ0+r)
    lg.wait("ow")
    a("s_barrier")
    OA = KX
    ldsr(OA, vA, 0, "o0"); ldsr(OA+4, vA, 8192, "o1")
    n0 = opt.get("n0", 2)
    def oread2(j):
        if j<4: ldsr(L+4*j, vT, j*1024, "O7")
        else: ldsr(A0+4*(j-4), vT, 16384+(j-4)*1024, "O8")
    for j in range(n0): oread2(j)
    sp("bar3")
    def wofrag(c,u):
        if c==7: return Lf(u)
        if c==8: return f"v[{A0+8*u}:{A0+8*u+7}]"
        return FR[("o",c,u)]
    accs = {0:SEL, 1:AQ0, 2:AQ1, 3:AK0, 4:AK1, 5:VX, 6:VX+4, 7:SEL, 8:AQ0}
    def pv(c):
        x = accs[c]
        return [f"v_add_f32 v{x}, v{x}, v{x+2}", f"v_add_f32 v{x+1}, v{x+1}, v{x+3}", f"v_cvt_pk_bf16_f32 v{x}, v{x}, v{x+1}\nv_bfi_b32 v{x}, 1, s{sTAG}, v{x}"]
    def ps(c):
        return f"buffer_store_dword v{accs[c]}, v{vQ}, {WS}, s{(sT0,sT1,sT2)[c>>2]} offen offset:{(c&3)*1024}{st}"
    order = [(c,u) for c in range(9) for u in range(2)]
    def oread(j):
        if j<4: ldsr(L+4*j, vT, j*1024, "O7")
        else: ldsr(A0+4*(j-4), vT, 16384+(j-4)*1024, "O8")
    Z = lambda r: f"v_mov_b64 v[{r}:{r+1}], 0"
    sal = {0:[f"s_add_u32 s{sT0}, s{sPARTW}, s{sHC}", f"s_add_u32 s{sKM}, s{sKM}, 0x20000"], 1:[f"s_add_u32 s{sT1}, s{sT0}, 4096", f"s_add_u32 s{sVM}, s{sVM}, 0x10000"],
           2:[f"s_add_u32 s{sT2}, s{sT0}, 8192", f"s_add_u32 s{sL0}, s{sRM}, s{sPARTW}"], 3:[f"s_add_u32 s{sL0+1}, s{sL0}, 36864", f"s_add_u32 s{sL0+2}, s{sL0}, {2*36864}"],
           4:[f"s_add_u32 s{sL0+3}, s{sL0}, {3*36864}", f"s_add_u32 s{sT4}, s{sRM}, s{sMEMW}"]}
    def pvl(c): return "\n".join(pv(c)).split("\n")
    vq = pvl(0)+pvl(1)+[Z(SEL),Z(SEL+2)]+pvl(2)+[Z(AQ0),Z(AQ0+2)]+pvl(3)+pvl(4)+pvl(5)+pvl(6)+pvl(7)
    per = {4:3,5:3,6:2,7:0,8:3,9:3,10:3,11:3,12:2,13:2,14:2,15:2,16:0,17:4}
    per = {4:3,5:3,6:2,7:3,8:3,9:3,10:3,11:2,12:2,13:3,14:1,15:4,16:0,17:4}
    stores = {6:[0],7:[1],9:[2],11:[3],13:[4],15:[5],16:[6]}
    sched = {}
    for i in range(18):
        n = per.get(i,0)
        sched[i] = ([ps(c) for c in stores.get(i,[])], vq[:n]); vq = vq[n:]
    assert not vq
    lg.wait("o0")
    for i,(c,u) in enumerate(order):
        if i==1: lg.wait("o1")
        if (c,u)==(7,0): lg.wait("O7")
        if (c,u)==(8,0): lg.wait("O8")
        smf(accs[c], OA+4*u, wofrag(c,u))
        for l in sal.get(i,[]): a(l)
        if i + n0 < 8 and i < 6: oread2(i + n0)
        if i == 5:
            for j in range(6 + n0, 8): oread2(j)
        mem, val = sched.get(i, ([],[]))
        for l in mem+val: a(l)
    a(ps(7))
    for l in pv(8): a(l)
    a(ps(8))
    sp("wo")
    RS, RD, R0 = VX, VX+4, A0
    a(f"""
    s_cmp_eq_u32 s{sRED}, -1
    {"s_branch" if comp_only else "s_cbranch_scc1"} {P}nored
    """)
    def loadsA():
        for mm in range(4):
            a(f"buffer_load_dwordx4 {vr(R0+4*mm)}, v{vRl}, {WS}, s{sL0+mm} offen sc1")
    lg.clear()
    ldsr(RS, vA, RSEL_OFF, "rs")
    a(f"s_cmp_lg_u32 s{sW}, 1\ns_cbranch_scc1 {P}pollA")
    delay(opt.get("dA", 256))
    a.label(P+"pollA")
    loadsA()
    rotate()
    if True:
        a(f"v_xor_b32 v{vT}, {1<<14}, v{vR1}")
        for p in range(4): ldsr(L+4*p, vR1, p*1024, "prep")
        for p in range(2): ldsr(KX+4*p, vT, p*1024, "prep")
        ldsr(SEL, vA, SEL_OFF, "prep")
        for r in range(0,16,2): z2(AQ0+r)
    if twoA:
        delay(max(twoA-160,0)); loadsA()
    a("s_waitcnt lgkmcnt(7)")
    a.label(P+"chkA")
    a(f"s_cmp_eq_u32 s{sT5}, 0\ns_cbranch_scc1 {P}chkA0")
    def chain(op, extra=0):
        for mm in range(4):
            a(f"s_waitcnt vmcnt({3-mm+extra})")
            b = R0+4*mm
            if not extra: mf32(RD, RS, b, None if mm==0 else RD)
            if mm==0:
                a(f"v_bitop3_b32 v{vS}, v{b}, v{b+1}, v{b+2} bitop3:{op}"); a(f"v_bitop3_b32 v{vS}, v{vS}, v{b+3}, 1 bitop3:{op if op==0x80 else 0xfc}")
            else:
                a(f"v_bitop3_b32 v{vS}, v{vS}, v{b}, v{b+1} bitop3:{op}"); a(f"v_bitop3_b32 v{vS}, v{vS}, v{b+2}, v{b+3} bitop3:{op}")
            if extra: mf32(RD, RS, b, None if mm==0 else RD)
        if extra: a("s_nop 1")
    xa = 4 if twoA else 0
    chain(0x80, xa)
    a(f"v_cmp_ne_u32 vcc, 1, v{vS}")
    a(f"s_cbranch_vccnz {P}failA1")
    a.label(P+"gotA")
    sp("gotA")
    a(f"""
    s_nop 3
    v_add_f32_dpp v{RD}, v{RD}, v{RD} row_ror:8 row_mask:0xf bank_mask:0xf
    v_add_f32_dpp v{RD+1}, v{RD+1}, v{RD+1} row_ror:8 row_mask:0xf bank_mask:0xf
    v_cvt_pk_bf16_f32 v{RD}, v{RD}, v{RD+1}
    buffer_store_dword v{RD}, v{vRs}, {WS}, s{sT4} offen{st}
    """)
    sp("pub")
    a(f"s_add_u32 s{sT0}, s{sRM}, s{sMEMA}")
    a(f"v_mov_b32 v{vS}, -1")
    a(f"buffer_store_dword v{vS}, v{vRs}, {WS}, s{sT0} offen{st}")
    for p in range(2,4): ldsr(KX+4*p, vT, p*1024, "prep")
    dump2()
    if opt.get("align", 0):
        a(f"s_cmp_lg_u32 s{sW}, 1\ns_cbranch_scc1 {P}alignB")
        delay(opt.get("dB", 128) - (64 if stamps else 0))
        a.label(P+"alignB")
        a("s_barrier")
    else:
        a(f"s_cmp_eq_u32 s{sW}, 1\ns_cbranch_scc1 {P}lateB")
        delay(opt.get("dB0", 192))
        a.label(P+"lateB")
        delay(opt.get("dB", 128) - (64 if stamps else 0))
    a(f"s_branch {P}pollB")
    a.label(P+"chkA0")
    chain(0xfe)
    a(f"v_and_b32 v{vS}, 1, v{vS}")
    a(f"v_cmp_ne_u32 vcc, 0, v{vS}")
    a(f"s_cbranch_vccz {P}gotA")
    a.label(P+"failA1")
    cnt(0x10000)
    loadsA()
    a(f"""
    s_sub_u32 s{sBUD}, s{sBUD}, 1
    s_cbranch_scc0 {P}chkA
    s_mov_b32 s{sBUD}, 0
    s_branch {P}gotA
    """)
    a.label(P+"retryB")
    cnt(1)
    issueB()
    a("s_nop 7")
    for r in range(0,12,2): z2(AQ0+r)
    a(f"""
    s_sub_u32 s{sBUD}, s{sBUD}, 1
    s_cbranch_scc0 {P}top
    s_mov_b32 s{sBUD}, 0
    s_waitcnt vmcnt(0)
    s_branch {P}gotB
    """)
    if opt.get("kvcheck"):
        a.label(P+"kvwait")
        a(f"""
        s_waitcnt vmcnt(0)
        v_lshlrev_b32 v{A2}, 3, v{vA}
        s_mov_b32 s{sT1}, {WS_FLAGS+FL_EXP}
        s_mov_b64 exec, 0x1ff
        buffer_load_dword v{A3}, v{A2}, {WS}, s{sT1} offen sc1
        s_waitcnt vmcnt(0)
        v_cmp_le_u32 vcc, 32, v{A3}
        s_mov_b64 exec, -1
        s_ff0_i32_b32 s{sT1}, vcc_lo
        s_lshl_b32 s{sKVR}, s{sT1}, 3
        s_sub_u32 s{sKVR}, s{sKVR}, 8
        s_cmp_lt_u32 s{sT1}, 2
        s_cbranch_scc0 {P}kvn
        s_lshl_b32 s{sKVR}, s{sT1}, 2
{P}kvn:
        s_cmp_eq_u32 s{sKVR}, 64
        s_cselect_b32 s{sKVR}, 1000, s{sKVR}
        s_cmp_lt_u32 s{sT0}, s{sKVR}
        s_cbranch_scc1 {P}kvok
        s_mov_b32 s{sPF}, 0x40000000
        s_cmp_lt_u32 s{sSTEP}, s{sKVR}
        s_cbranch_scc1 {P}kvok
        s_sleep 1
        s_sub_u32 s{sBUD}, s{sBUD}, 1
        s_cbranch_scc0 {P}kvwait
        s_mov_b32 s{sBUD}, 0
        s_branch {P}kvok
        """)
    a.label(P+"nored")
    lg.clear()
    prep()
    rotate()
    dump2()
    if opt.get("align", 0): a("s_barrier")
    else: delay(opt.get("dN", 800) - (64 if stamps else 0))
    a(f"s_branch {P}pollB")
    a.label(P+"done")
    if stamps:
        a(f"v_lshlrev_b32 v{vS}, 2, v{vA}")
        for i in range(len(names)): a(f"buffer_store_dword v{244+i}, v{vS}, {WS}, s{sSTO} offen offset:{4*i}")
        a(f"buffer_store_dword v255, v{vS}, {WS}, s{sSTO} offen offset:60")
    a(f"""
    s_waitcnt vmcnt(0) lgkmcnt(0)
    s_barrier
    s_mov_b64 exec, s[{sFm}:{sFm+1}]
    v_mov_b32 v{SEL}, 64
    buffer_store_dword v{SEL}, v{vA}, {WS}, s{sFLG} offen sc1
    s_mov_b64 exec, -1
    """)
    a.label(P+"exit")
    return len(names)

def rec_role(a, stamps=False, opt=None):
    opt = opt or {}
    a(f"""
    v_lshrrev_b32 v10, 6, v0
    v_and_b32 v11, 63, v0
    v_readfirstlane_b32 s{sW}, v10
    v_lshlrev_b32 v{vA}, 4, v11
    """)
    if opt.get("claim"):
        a.label("Lr_try")
        a(f"""
        s_lshl_b32 s{sT0}, 1, s{sH}
        v_mov_b32 v64, s{sT0}
        v_mov_b32 v65, 0
        s_cmp_eq_u32 s{sW}, 0
        s_cselect_b64 exec, 1, 0
        buffer_atomic_or v64, v65, {srd(S_DBG)}, 0 offen offset:{DB_ROLE} sc0
        s_mov_b64 exec, -1
        """)
    rec_mem0_load(a)
    for w in range(1,4):
        a(f"s_cmp_eq_u32 s{sW}, {w}")
        a(f"s_cbranch_scc1 Lr_pro{w}")
    for w in range(4):
        a.label(f"Lr_pro{w}")
        rec_prologue_wave(a, w, opt)
        a("s_branch Lr_prodone")
    a.label("Lr_mid")
    if opt.get("claim"):
        a(f"""
        s_cmp_lg_u32 s{sW}, 0
        s_cbranch_scc1 Lr_c1
        s_waitcnt vmcnt(36)
        s_mov_b64 exec, 1
        ds_write_b32 v65, v64
        s_mov_b64 exec, -1
        s_waitcnt lgkmcnt(0)
Lr_c1:
        s_barrier
        ds_read_b32 v64, v65
        s_waitcnt lgkmcnt(0)
        v_readfirstlane_b32 s{sT0}, v64
        s_barrier
        s_bitcmp0_b32 s{sT0}, s{sH}
        s_cbranch_scc1 Lr_mine
        s_waitcnt vmcnt(0)
        s_barrier
        v_lshrrev_b32 v11, 4, v{vA}
        s_cmp_eq_u32 s{sT0}, -1
        s_cbranch_scc1 Lr_none
        s_ff0_i32_b32 s{sH}, s{sT0}
        s_branch Lr_try
Lr_none:
        s_lshl_b32 s{sT0}, s{sW}, 6
        v_add_u32 v0, s{sT0}, v11
        s_cmp_eq_u32 s3, 0
        s_cbranch_scc1 L_par
        s_branch L_p23
Lr_mine:
        """)
    if opt.get("tstamp"): a("s_memrealtime s[36:37]")
    rec_setup(a)
    rec_init_exchange(a)
    a("s_waitcnt vmcnt(0)" if False else "")
    for w in range(1,4):
        a(f"s_cmp_eq_u32 s{sW}, {w}")
        a(f"s_cbranch_scc1 Lr_pro2_{w}")
    a("s_branch Lr_pro2_0")
    a.label("Lr_prodone")
    if opt.get("tstamp"): a("s_memrealtime s[38:39]")
    a(f"""
    v_bfe_u32 v10, v{vA}, 4, 5
    v_mov_b32 v12, 0
    s_mov_b32 s{sT1}, 0x4000000
    s_branch Lr_wchk
Lr_wbar:
    buffer_load_ubyte v68, v10, {srd(S_DBG)}, 0 offen offset:{DB_TAB} sc1
    buffer_load_dword v69, v12, {srd(S_DBG)}, 0 offen offset:{DB_INIT} sc1
    s_sub_u32 s{sT1}, s{sT1}, 1
    s_cmp_eq_u32 s{sT1}, 0
    s_cbranch_scc1 Lr_exit
Lr_wchk:
    s_waitcnt vmcnt(0)
    {"v_min_u32 v11, v68, v69" if opt.get("kvcheck") else "v_mov_b32 v11, v68"}
    v_cmp_eq_u32 vcc, 0, v11
    s_cbranch_vccnz Lr_wbar
    """)
    if opt.get("kvcheck"):
        a(f"""
    s_mov_b32 s{sT0}, {WS_FLAGS+FL_EXP}
Lr_wexp:
    buffer_load_dword v69, v12, {srd(S_WS)}, s{sT0} offen sc1
    s_sub_u32 s{sT1}, s{sT1}, 1
    s_cmp_eq_u32 s{sT1}, 0
    s_cbranch_scc1 Lr_exit
    s_waitcnt vmcnt(0)
    v_cmp_gt_u32 vcc, 32, v69
    s_cbranch_vccnz Lr_wexp
    s_mov_b32 s{sKVR}, 4
    buffer_load_dword v{vF1}, v{vF0}, {srd(S_WS)}, s{sKX} offen sc1
    """)
    a(f"""
    s_add_u32 s{sT0}, s{sXCC}, 1
    v_cmp_ne_u32 vcc, s{sT0}, v68
    s_cbranch_vccnz Lr_slow
    s_memrealtime s[96:97]
    """)
    n = rec_loop(a, "f", stamps, opt)
    a("s_branch Lr_exit")
    a.label("Lr_slow")
    rec_loop(a, "s", False, opt)
    a.label("Lr_exit")
    return n
```
